```python
import torch

def _softmax(x, axis=-1):
    return torch.softmax(x, dim=axis)
def _gelu(x):
    return torch.nn.functional.gelu(x, approximate="tanh")
def _silu(x):
    return torch.nn.functional.silu(x)
def _sigmoid(x):
    return torch.sigmoid(x)
def _layernorm(x, axis=-1, eps=1e-5):
    m = x.mean(dim=axis, keepdim=True)
    v = x.var(dim=axis, keepdim=True, unbiased=False)
    return (x - m) / torch.sqrt(v + eps)
def _scatter_add(tgt, idx, src, axis=0):
    return tgt.clone().index_add_(axis, idx, src)
def _segment_sum(src, seg, n):
    out = torch.zeros((n,) + src.shape[1:], dtype=src.dtype)
    return out.index_add_(0, seg, src)
def _pad(x, pw):
    flat = tuple(v for pair in reversed(pw) for v in pair)
    return torch.nn.functional.pad(x, flat)

kernel_name = 'gated_mix__gqa_block_cached__gqa_block_cached__decode'

def setup_inputs():

    _w = (lambda a: (lambda t: t.to(torch.bfloat16) if t.is_floating_point() else t)(torch.as_tensor(a)))
    def _A_setup():
        B, Sq, D = 2, 1, 576
        Hq, Hkv, Sk, Dh = 32, 16, 16384, 128
        assert Hq % Hkv == 0, (Hq, Hkv)
        return {
            "x": _w((lambda *s: torch.randn(*s, dtype=torch.bfloat16) * 0.05)(B, Sq, D)),
            "k_cache": _w((lambda *s: torch.randn(*s, dtype=torch.bfloat16) * 6.4)(B, Hkv, Sk, Dh)),
            "v_cache": _w((lambda *s: torch.randn(*s, dtype=torch.bfloat16) * 0.05)(B, Hkv, Sk, Dh)),
            "wq": _w((lambda *s: torch.randn(*s, dtype=torch.bfloat16) * 6.4)(D, Hq * Dh) * (D ** -0.5)),
            "wo": _w((lambda *s: torch.randn(*s, dtype=torch.bfloat16) * 0.05)(Hq * Dh, D) * ((Hq * Dh) ** -0.5)),
        }
    _A_in = _A_setup()

    def _B_setup():
        B, Sq, D = 2, 1, 576
        Hq, Hkv, Sk, Dh = 32, 16, 16384, 128
        assert Hq % Hkv == 0, (Hq, Hkv)
        return {
            "x": _w((lambda *s: torch.randn(*s, dtype=torch.bfloat16) * 0.05)(B, Sq, D)),
            "k_cache": _w((lambda *s: torch.randn(*s, dtype=torch.bfloat16) * 6.4)(B, Hkv, Sk, Dh)),
            "v_cache": _w((lambda *s: torch.randn(*s, dtype=torch.bfloat16) * 0.05)(B, Hkv, Sk, Dh)),
            "wq": _w((lambda *s: torch.randn(*s, dtype=torch.bfloat16) * 6.4)(D, Hq * Dh) * (D ** -0.5)),
            "wo": _w((lambda *s: torch.randn(*s, dtype=torch.bfloat16) * 0.05)(Hq * Dh, D) * ((Hq * Dh) ** -0.5)),
        }
    _B_in = _B_setup()

    return {
        "A_x": _A_in["x"],
        "A_k_cache": _A_in["k_cache"],
        "A_v_cache": _A_in["v_cache"],
        "A_wq": _A_in["wq"],
        "A_wo": _A_in["wo"],
        "B_x": _B_in["x"],
        "B_k_cache": _B_in["k_cache"],
        "B_v_cache": _B_in["v_cache"],
        "B_wq": _B_in["wq"],
        "B_wo": _B_in["wo"],
        "gate_w": _w((lambda *s: torch.randn(*s, dtype=torch.bfloat16) * 0.05)(576) * 16.0),
    }

def reference(A_x, A_k_cache, A_v_cache, A_wq, A_wo, B_x, B_k_cache, B_v_cache, B_wq, B_wo, gate_w):
    def _A_ref(x, k_cache, v_cache, wq, wo):
        B, Sq, D = x.shape
        Hq, Dh = 32, 128
        Hkv = k_cache.shape[1]
        rep = Hq // Hkv
        q = (lambda x, *d: x.permute(*d))((x @ wq).reshape(B, Sq, Hq, Dh), 0, 2, 1, 3)
        k = (lambda x, n, axis: torch.repeat_interleave(x, n, dim=axis))(k_cache, rep, axis=1)
        v = (lambda x, n, axis: torch.repeat_interleave(x, n, dim=axis))(v_cache, rep, axis=1)
        scores = torch.einsum("bhqd,bhkd->bhqk", q, k) * (Dh ** -0.5)
        p = _softmax(scores, axis=-1)
        o = torch.einsum("bhqk,bhkd->bhqd", p, v)
        return (lambda x, *d: x.permute(*d))(o, 0, 2, 1, 3).reshape(B, Sq, Hq * Dh) @ wo

    def _B_ref(x, k_cache, v_cache, wq, wo):
        B, Sq, D = x.shape
        Hq, Dh = 32, 128
        Hkv = k_cache.shape[1]
        rep = Hq // Hkv
        q = (lambda x, *d: x.permute(*d))((x @ wq).reshape(B, Sq, Hq, Dh), 0, 2, 1, 3)
        k = (lambda x, n, axis: torch.repeat_interleave(x, n, dim=axis))(k_cache, rep, axis=1)
        v = (lambda x, n, axis: torch.repeat_interleave(x, n, dim=axis))(v_cache, rep, axis=1)
        scores = torch.einsum("bhqd,bhkd->bhqk", q, k) * (Dh ** -0.5)
        p = _softmax(scores, axis=-1)
        o = torch.einsum("bhqk,bhkd->bhqd", p, v)
        return (lambda x, *d: x.permute(*d))(o, 0, 2, 1, 3).reshape(B, Sq, Hq * Dh) @ wo

    x = A_x
    g = _sigmoid((x * gate_w).sum(-1, keepdims=True))
    a = _A_ref(x, A_k_cache, A_v_cache, A_wq, A_wo)
    b = _B_ref(x, B_k_cache, B_v_cache, B_wq, B_wo)
    return g * a + (1 - g) * b
```

```python
import re

TRANS = ("v_exp_", "v_log_", "v_rcp_", "v_rsq_", "v_sqrt_", "v_sin_", "v_cos_")

def regs(tok):
    tok = tok.strip()
    tok = re.sub(r"^-?abs\((.*)\)$", r"\1", tok).lstrip("-").strip("|")
    m = re.fullmatch(r"([vsa])(\d+)", tok)
    if m:
        return {(m.group(1), int(m.group(2)))}
    m = re.fullmatch(r"([vsa])\[(\d+):(\d+)\]", tok)
    if m:
        return {(m.group(1), i) for i in range(int(m.group(2)), int(m.group(3)) + 1)}
    if tok == "vcc":
        return {("s", 106), ("s", 107)}
    if tok == "m0":
        return {("s", 124)}
    if tok == "exec":
        return {("s", 126), ("s", 127)}
    return set()

class Ins:
    def __init__(self, text):
        self.text = text
        t = text.split(";")[0].strip()
        self.label = t[:-1] if t.endswith(":") else None
        self.isdir = t.startswith(".") or not t
        self.op = None
        self.dst = set(); self.src = set(); self.slots = 0
        self.cls = None
        if self.label or self.isdir:
            return
        parts = t.split(None, 1)
        op = self.op = parts[0]
        rest = parts[1] if len(parts) > 1 else ""
        rest = re.sub(r"quad_perm:\[[^\]]*\]", "", rest)
        ops = [o.strip().split(" ")[0] for o in rest.split(",")] if rest else []
        self.ops = ops
        self.slots = int(ops[0], 0) + 1 if op == "s_nop" else 1
        R = [regs(o) for o in ops]
        allr = set().union(*R) if R else set()
        self.dpp = "_dpp" in op
        self.lds_dma = False
        if op.startswith("v_mfma"):
            self.cls = "mfma"; self.dst = R[0]; self.a = R[1]; self.b = R[2]; self.c = R[3]; self.src = R[1] | R[2] | R[3]
            assert "16x16x32" in op
        elif op.startswith("v_permlane"):
            self.cls = "valu"; self.dst = allr; self.src = allr
        elif op.startswith("v_"):
            self.cls = "valu"; self.dst = R[0]; self.src = set().union(*R[1:]) if len(R) > 1 else set()
            if op.startswith(("v_fmac", "v_writelane")) or self.dpp:
                self.src |= R[0]
        elif op.startswith(("buffer_", "global_")):
            self.cls = "vmem"
            self.lds_dma = t.endswith(" lds") or "load_lds" in op
            if "load" in op and not self.lds_dma:
                self.dst = R[0]; self.src = set().union(*R[1:])
            elif "atomic" in op and " sc0" in t:
                self.dst = R[0]; self.src = allr
            else:
                self.src = allr
            if "store_dwordx4" in op or "store_dwordx3" in op:
                self.wide = R[0] if op.startswith("buffer_") else R[1]
        elif op.startswith("ds_"):
            self.cls = "ds"
            if "read" in op or "rtn" in op or "swizzle" in op or "permute" in op:
                self.dst = R[0]; self.src = set().union(*R[1:])
            else:
                self.src = allr
        elif op.startswith("s_"):
            self.cls = "salu"
            if op.startswith(("s_cmp", "s_bitcmp", "s_cbranch", "s_branch", "s_waitcnt", "s_nop", "s_sleep", "s_barrier", "s_endpgm", "s_setprio")):
                self.src = allr
            else:
                self.dst = R[0] if R else set(); self.src = set().union(*R[1:]) if len(R) > 1 else set()
        else:
            raise ValueError(text)

def need(p, c):
    n = 0
    v = lambda s: {r for r in s if r[0] in "va"}
    s_ = lambda s: {r for r in s if r[0] == "s"}
    if p.cls == "valu":
        if c.cls == "mfma" and v(p.dst) & c.src: n = max(n, 2)
        if c.cls == "valu":
            if c.op.startswith(("v_readfirstlane", "v_readlane")) and v(p.dst) & c.src: n = max(n, 1)
            if (c.dpp or c.op.startswith("v_permlane")) and v(p.dst) & c.src: n = max(n, 2)
            if p.op.startswith(TRANS) and v(p.dst) & c.src: n = max(n, 1)
            if s_(p.dst) & c.src: n = max(n, 4 if c.op.startswith(("v_readlane", "v_writelane")) else 2)
        if c.cls == "vmem" and s_(p.dst) & c.src: n = max(n, 5)
    if p.cls == "mfma":
        if c.cls == "mfma":
            if p.dst & (c.a | c.b): n = max(n, 8)
            if p.dst & c.c and p.dst != c.c: n = max(n, 6)
            if p.dst & c.dst and p.dst != c.c: n = max(n, 8)
        elif c.cls in ("valu", "vmem", "ds"):
            if p.dst & (c.src | c.dst): n = max(n, 8)
            if c.cls == "valu" and p.c & c.dst: n = max(n, 3)
    if p.cls == "salu" and ("s", 124) in p.dst and c.cls == "vmem" and c.lds_dma: n = max(n, 1)
    if p.cls == "vmem" and hasattr(p, "wide") and p.wide & c.dst: n = max(n, 2)
    return n

def pad(lines):
    ins = [Ins(l) for l in lines]
    added = 0
    while True:
        labels = {i.label: k for k, i in enumerate(ins) if i.label}
        srcs = {}
        for k, i in enumerate(ins):
            if i.op and i.op.startswith(("s_cbranch", "s_branch")):
                srcs.setdefault(labels[i.ops[0]], []).append(k)
        fix = None
        for k, c in enumerate(ins):
            if not c.op or c.cls == "salu":
                continue
            worst = 0
            stack = [(k - 1, 0, True)]
            seen = {}
            while stack:
                j, d, fall = stack.pop()
                if j < 0 or d >= 8:
                    continue
                p = ins[j]
                if fall and p.op in ("s_branch", "s_endpgm"):
                    continue
                if seen.get(j, 99) <= d:
                    continue
                seen[j] = d
                if p.op:
                    worst = max(worst, need(p, c) - d)
                if p.label:
                    for b in srcs.get(j, []):
                        stack.append((b, d, False))
                stack.append((j - 1, d + p.slots, True))
            if worst > 0:
                fix = (k, worst)
                break
        if not fix:
            return [i.text for i in ins], added
        k, w = fix
        ins.insert(k, Ins(f"s_nop {w-1}"))
        added += 1
```

```python
import sys
sys.path.insert(0, "work")
from hazard import pad

NAME = "gated_mix__gqa_block_cached__gqa_block_cached__decode"
HEADER = open("cdna_kernels/" + NAME + ".s.ref").read().split("; Override launch")[0]

QBOX, S1O, S1ML, S2, STAMP = 0, 0x40000, 0x80000, 0x90000, 0x100000
LOG2E = 0x3FB8AA3B
SCALE = 0x3DB504F3

def gen(W=20, g=(8, 9), t=(12, 13, 10, 11), c=(20, 21), wgmap="plain", stamps=False, emul=True, NR=4, wo_per=2, poll_sleep=1):
    L = []
    a = L.append
    used = list(g) + list(t) + list(c)
    assert len(set(used)) == 8
    rest = [b for b in range(8, 22) if b not in used]
    mask = sum(1 << b for b in rest)
    MISC = NR * 32768
    F_FREED, F_QRED, F_DONE, F_LANDED, F_QRDY, ML, RED, QBF = 0, 16, 32, 48, 52, 128, 256, 4352
    LDS = MISC + 5120
    uid = [0]
    def lab(p):
        uid[0] += 1
        return f"L_{p}{uid[0]}"

    sL, sG, sKvh, sJ, sH, sQ, sCw, sTmo = "s22", "s23", "s36", "s37", "s38", "s39", "s40", "s41"
    sT0, sT1, sT2, sT3 = "s42", "s43", "s44", "s45"
    K_, V_, WQ, WO, GATE, OUT, DBG, WS, X_ = "s[4:5]", "s[6:7]", "s[8:9]", "s[10:11]", "s[12:13]", "s[14:15]", "s[16:17]", "s[18:19]", "s[20:21]"
    vMisc = "v3"
    nst = [0]
    def stamp(i):
        if stamps:
            a(f"s_memrealtime s[{64+2*i}:{65+2*i}]")
    def finish():
        if stamps:
            stamp(7)
            a("s_waitcnt lgkmcnt(0)")
            a("s_mul_i32 s42, s2, 5")
            a("s_add_u32 s42, s42, s3")
            a("s_lshl_b32 s42, s42, 5")
            a(f"s_add_u32 s42, s42, {STAMP}")
            a("s_mov_b64 exec, 1")
            a("v_mov_b32 v1, s42")
            for i in range(8):
                a(f"v_mov_b32 v{8+i}, s{64+2*i}")
            a(f"global_store_dwordx4 v1, v[8:11], {WS}")
            a(f"global_store_dwordx4 v1, v[12:15], {WS} offset:16")
        a("s_endpgm")
    def retry(loop, sleep=True):
        if sleep and poll_sleep:
            a(f"s_sleep {poll_sleep}")
        a(f"s_sub_u32 {sTmo}, {sTmo}, 1")
        a(f"s_cbranch_scc0 {loop}")
        a("s_endpgm")
    def flag(off, v):
        a("s_mov_b64 exec, 1")
        a(f"ds_write_b32 {off[0]}, {v} offset:{off[1]}")
        a("s_mov_b64 exec, -1")
    def poll1(off, sval, need, vt):
        lp, ok = lab("p"), lab("ok")
        a(f"s_cmp_ge_i32 {sval}, {need}")
        a(f"s_cbranch_scc1 {ok}")
        a(f"{lp}:")
        a(f"ds_read_b32 {vt}, {vMisc} offset:{off}")
        a("s_waitcnt lgkmcnt(0)")
        a(f"v_readfirstlane_b32 {sval}, {vt}")
        a(f"s_cmp_ge_i32 {sval}, {need}")
        a(f"s_cbranch_scc1 {ok}")
        retry(lp)
        a(f"{ok}:")
    def min4(r, s):
        a(f"v_min3_u32 v{r}, v{r}, v{r+1}, v{r+2}")
        a(f"v_min_u32 v{r}, v{r}, v{r+3}")
        a(f"v_readfirstlane_b32 {s}, v{r}")
    def anyempty(rs, vt):
        rs = list(rs)
        a(f"v_max3_u32 {vt}, v{rs[0]}, v{rs[1]}, v{rs[2]}")
        k = 3
        while k < len(rs):
            if k + 1 < len(rs):
                a(f"v_max3_u32 {vt}, {vt}, v{rs[k]}, v{rs[k+1]}"); k += 2
            else:
                a(f"v_max_u32 {vt}, {vt}, v{rs[k]}"); k += 1
        a(f"v_cmp_eq_u32 vcc, -1, {vt}")
    def rnd(d, s):
        a(f"v_cvt_pk_bf16_f32 {d}, 0, {s}")
    def xrow(op, x, tmp, which=(32, 16)):
        for n in which:
            a(f"v_mov_b32 {tmp}, {x}")
            a(f"v_permlane{n}_swap_b32 {tmp}, {x}")
            a(f"{op} {x}, {tmp}, {x}")

    a(f"{NAME}_kernel:")
    a("s_cmp_ge_u32 s2, 256")
    a("s_cbranch_scc1 L_exit")
    if wgmap == "plain":
        a(f"s_mov_b32 {sL}, s2")
    else:
        a(f"s_and_b32 {sL}, s2, 7")
        a(f"s_lshl_b32 {sL}, {sL}, 5")
        a(f"s_lshr_b32 {sT0}, s2, 3")
        a(f"s_add_u32 {sL}, {sL}, {sT0}")
    a(f"s_cmp_ge_u32 {sL}, 128")
    a(f"s_cselect_b32 {sT0}, 48, 8")
    a(f"s_load_dwordx8 s[4:11], s[0:1], {sT0}")
    a("s_load_dwordx8 s[12:19], s[0:1], 80")
    a("s_load_dwordx2 s[20:21], s[0:1], 0")
    if stamps:
        for i in range(8):
            a(f"s_mov_b32 s{64+2*i}, 0")
    stamp(0)
    a("v_lshrrev_b32 v1, 6, v0")
    a("v_and_b32 v0, 63, v0")
    a("v_readfirstlane_b32 s3, v1")
    a(f"s_lshr_b32 {sG}, {sL}, 3")
    a(f"s_and_b32 {sKvh}, {sG}, 15")
    a(f"s_and_b32 {sJ}, {sL}, 7")
    a(f"s_and_b32 {sH}, {sL}, 1")
    a(f"s_lshr_b32 {sQ}, {sJ}, 1")
    a(f"s_mov_b32 {sTmo}, 0x400000")
    a(f"v_mov_b32 {vMisc}, {MISC}")
    a("v_and_b32 v1, 15, v0")
    a("v_lshrrev_b32 v2, 4, v0")
    a("s_cmp_lg_u32 s3, 0")
    a("s_cbranch_scc1 L_consumer")

    sBase, sRnd, sRing, sRho, sSo, sOff = "s46", "s47", "s48", "s49", "s50", "s51"
    vV, vK, vCnt, vF, vWo = 4, 5, 9, 12, 16
    a("s_setprio 3")
    a(f"v_lshl_add_u32 v10, v1, 2, {vMisc}")
    a("v_mov_b32 v11, 0")
    a("ds_write_b32 v10, v11")
    a("v_and_b32 v10, 1, v2")
    a(f"v_lshlrev_b32 v10, {g[0]}, v10")
    a("v_lshrrev_b32 v11, 1, v2")
    a(f"v_lshl_add_u32 v10, v11, {g[1]}, v10")
    a(f"v_lshl_add_u32 v{vV}, v1, 4, v10")
    a(f"v_lshlrev_b32 v11, 6, v2")
    a(f"v_xor_b32 v{vK}, v11, v{vV}")
    for u in range(1, 4):
        a(f"v_xor_b32 v{vK+u}, {u*16}, v{vK}")
    first_pub = (W - 1) % 4
    a(f"v_mov_b32 v{vCnt}, {first_pub - W + 1 - 4}")
    for i in range(4):
        a(f"v_mov_b32 v{vF+i}, 0")
    a(f"s_lshr_b32 {sBase}, {sJ}, 2")
    a(f"s_lshl_b32 {sBase}, {sBase}, 4")
    a(f"s_add_u32 {sBase}, {sBase}, {sKvh}")
    a(f"s_lshl_b32 {sBase}, {sBase}, 22")
    for i, b in enumerate(c):
        a(f"s_bfe_u32 {sT0}, {sL}, {i | (1 << 16)}")
        a(f"s_lshl_b32 {sT0}, {sT0}, {b}")
        a(f"s_add_u32 {sBase}, {sBase}, {sT0}")
    a(f"s_mov_b32 {sRnd}, 0")
    a(f"s_mov_b32 {sRing}, 0")
    a(f"s_mov_b32 {sRho}, {1 - NR}")
    for r, n in ((24, 0x8000000), (28, 0x8000000), (32, 4096 * 1152)):
        a(f"s_mov_b32 s{r+2}, {n}")
        a(f"s_mov_b32 s{r+3}, 0x20000")
    a("s_waitcnt lgkmcnt(0)")
    a("s_mov_b64 s[24:25], s[4:5]")
    a("s_mov_b64 s[28:29], s[6:7]")
    a("s_mov_b64 s[32:33], s[10:11]")
    a("s_barrier")
    stamp(1)
    def check_freed(need):
        lp, ok = lab("fr"), lab("frok")
        a(f"{lp}:")
        a("s_waitcnt lgkmcnt(0)")
        min4(vF, sT0)
        a(f"s_cmp_ge_i32 {sT0}, {need}")
        a(f"s_cbranch_scc1 {ok}")
        a(f"ds_read_b128 v[{vF}:{vF+3}], {vMisc} offset:{F_FREED}")
        if stamps:
            a("s_add_u32 s68, s68, 1")
        retry(lp)
        a(f"{ok}:")
    def publish():
        a(f"v_add_u32 v{vCnt}, 4, v{vCnt}")
        flag((vMisc, F_LANDED), f"v{vCnt}")
    a("L_round:")
    check_freed(sRho)
    a(f"s_add_u32 {sSo}, {sBase}, {sRnd}")
    a(f"s_mov_b32 m0, {sRing}")
    for n in range(32):
        j = n & 15
        off = sum(((j >> i) & 1) << t[i] for i in range(4))
        if n:
            a("s_addk_i32 m0, 0x400")
        a(f"s_add_u32 {sOff}, {sSo}, {off}")
        a(f"s_waitcnt vmcnt({W-1})")
        if n < 16:
            a(f"buffer_load_dwordx4 v{vK + (j & 3)}, s[24:27], {sOff} offen nt lds")
        else:
            a(f"buffer_load_dwordx4 v{vV}, s[28:31], {sOff} offen nt lds")
        if n % 4 == first_pub:
            publish()
        if 20 <= n < 29:
            k = n - 20
            a(f"v_add_u32 v10, {k*64}, v0")
            a(f"v_mul_u32_u24 v11, 3641, v10")
            a("v_lshrrev_b32 v11, 16, v11")
            a(f"v_mul_u32_u24 v11, 864, v11")
            a(f"v_lshl_add_u32 v{vWo+k}, v10, 4, v11")
        if n == 29:
            a(f"ds_read_b128 v[{vF}:{vF+3}], {vMisc} offset:{F_FREED}")
    a(f"s_add_u32 {sRing}, {sRing}, 32768")
    a(f"s_cmp_eq_u32 {sRing}, {NR*32768}")
    a(f"s_cselect_b32 {sRing}, 0, {sRing}")
    a(f"s_or_b32 {sRnd}, {sRnd}, {(~mask) & 0xffffffff}")
    a(f"s_add_u32 {sRnd}, {sRnd}, 1")
    a(f"s_and_b32 {sRnd}, {sRnd}, {mask}")
    a(f"s_add_i32 {sRho}, {sRho}, 1")
    a(f"s_cmp_lg_i32 {sRho}, {65 - NR}")
    a("s_cbranch_scc1 L_round")
    stamp(3)
    assert NR == 4
    check_freed(62)
    a(f"s_lshl_b32 {sSo}, {sKvh}, 1")
    a(f"s_add_u32 {sSo}, {sSo}, {sH}")
    a(f"s_mul_i32 {sSo}, {sSo}, {128*1152}")
    a(f"s_mul_i32 {sT0}, {sQ}, 288")
    a(f"s_add_u32 {sSo}, {sSo}, {sT0}")
    a("s_mov_b32 m0, 0")
    issued = 0
    def wo_load():
        nonlocal issued
        if issued:
            a("s_addk_i32 m0, 0x400")
            if issued % 9 == 0:
                a(f"s_add_u32 {sSo}, {sSo}, {32*1152}")
        a(f"buffer_load_dwordx4 v{vWo + issued % 9}, s[32:35], {sSo} offen nt lds")
        issued += 1
    for k in range(W):
        a(f"s_waitcnt vmcnt({W - 1 - k + issued})")
        if k % 4 == first_pub:
            publish()
        for _ in range(wo_per):
            if issued < 36:
                wo_load()
    stamp(4)
    while issued < 36:
        wo_load()
    a(f"v_mov_b32 v{vCnt}, 0x1000")
    a("s_waitcnt vmcnt(0)")
    flag((vMisc, F_LANDED), f"v{vCnt}")
    finish()

    vM, vKa, vVa, vCur, vOne, vCwA, vQ, vKd, vVd, vS, vB, vAcc, vMax, vSum = 4, 8, 12, 13, 18, 19, 20, 36, 52, 68, 72, 88, 92, 93
    T0, T1, T2, T3, vX, vCoef, vD = 94, 95, 96, 97, 96, 101, 104
    sLand, sNeed, sRo, sRh, sScale, sLg = "s46", "s47", "s48", "s49", "s50", "s51"
    a("L_consumer:")
    a(f"s_sub_u32 {sCw}, s3, 1")
    a(f"s_mul_i32 {sT0}, {sQ}, 144")
    a(f"s_mul_i32 {sT1}, {sCw}, 36")
    a(f"s_add_u32 {sT0}, {sT0}, {sT1}")
    a(f"s_lshl_b32 {sT1}, {sT0}, 1")
    a(f"s_lshl_b32 {sT0}, {sT0}, 13")
    a(f"s_lshl_b32 {sT2}, {sKvh}, 9")
    a(f"s_add_u32 {sT0}, {sT0}, {sT2}")
    a(f"s_lshl_b32 {sT2}, {sH}, 8")
    a(f"s_add_u32 {sT0}, {sT0}, {sT2}")
    a(f"v_bfe_u32 v{T0}, v0, 3, 1")
    a(f"v_mul_u32_u24 v{T0}, 1152, v{T0}")
    a(f"v_add_u32 v{T0}, {sT1}, v{T0}")
    a(f"v_lshl_add_u32 v{T1}, v2, 1, v{T0}")
    a(f"v_lshl_add_u32 v{T0}, v2, 4, v{T0}")
    a(f"v_lshlrev_b32 v{vCur}, 4, v1")
    a(f"v_lshl_add_u32 v{vCur+1}, v2, 13, v{vCur}")
    a(f"v_lshl_add_u32 v{vCur}, v2, 16, v{vCur}")
    a(f"v_mov_b32 v{vOne}, 1")
    a(f"s_lshl_b32 {sT2}, {sCw}, 2")
    a(f"v_add_u32 v{vCwA}, {sT2}, {vMisc}")
    a("s_mov_b32 s26, %d" % (576 * 8192))
    a("s_mov_b32 s27, 0x20000")
    def s1_addr(vo, vml):
        a(f"s_lshl_b32 {sT2}, {sG}, 13")
        a(f"s_lshl_b32 {sT3}, {sJ}, 9")
        a(f"s_add_u32 {sT2}, {sT2}, {sT3}")
        a(f"s_add_u32 {sT2}, {sT2}, {S1O}")
        a(f"v_and_b32 v{vo}, 31, v0")
        a(f"v_lshl_add_u32 v{vo}, v{vo}, 4, {sT2}")
        a(f"v_lshrrev_b32 v{vml}, 5, v0")
        a(f"v_lshl_add_u32 v{vo}, v{vml}, 12, v{vo}")
        a(f"s_lshl_b32 {sT2}, {sG}, 7")
        a(f"s_lshl_b32 {sT3}, {sJ}, 3")
        a(f"s_add_u32 {sT2}, {sT2}, {sT3}")
        a(f"s_add_u32 {sT2}, {sT2}, {S1ML}")
        a(f"v_lshl_add_u32 v{vml}, v{vml}, 6, {sT2}")
    def s2_base(s):
        a(f"s_mul_i32 {s}, {sQ}, {9*4096}")
        a(f"s_lshl_b32 {sT3}, {sG}, 1")
        a(f"s_add_u32 {sT3}, {sT3}, {sH}")
        a(f"s_lshl_b32 {sT3}, {sT3}, 6")
        a(f"s_add_u32 {s}, {s}, {sT3}")
        a(f"s_add_u32 {s}, {s}, {S2}")
    a(f"s_cmp_eq_u32 {sCw}, 1")
    a("s_cbranch_scc1 L_clear")
    a("s_waitcnt lgkmcnt(0)")
    a("s_barrier")
    a("L_clear_back:")
    a("s_mov_b64 s[24:25], s[8:9]")
    a(f"global_load_dwordx4 v[{vX}:{vX+3}], v{T0}, {X_}")
    a(f"global_load_ushort v{vX+4}, v{T1}, {X_} offset:64")
    for n in range(8):
        a(f"buffer_load_dwordx4 v[{vKd+4*n}:{vKd+4*n+3}], v{vCur}, s[24:27], {sT0} offen nt")
        a(f"s_add_u32 {sT0}, {sT0}, {8192 if n < 7 else 25*8192}")
    a(f"buffer_load_dwordx4 v[{vKd+32}:{vKd+35}], v{vCur+1}, s[24:27], {sT0} offen nt")
    stamp(1)
    a(f"v_and_b32 v{T0}, 1, v0")
    a(f"v_lshlrev_b32 v{T0}, 4, v{T0}")
    a(f"v_mov_b32 v{T1}, 0xffff")
    a(f"v_lshlrev_b32 v{T0}, v{T0}, v{T1}")
    a(f"v_bfe_u32 v{T1}, v0, 1, 2")
    for m in range(4):
        a(f"v_cmp_eq_u32 vcc, {m}, v{T1}")
        a(f"v_cndmask_b32 v{vM+m}, 0, v{T0}, vcc")
    a(f"s_lshl_b32 {sT2}, {sCw}, 12")
    a(f"v_and_b32 v{T0}, 3, v0")
    a(f"v_lshl_add_u32 v{T0}, v{T0}, 10, {sT2}")
    a(f"v_lshrrev_b32 v{T1}, 2, v1")
    a(f"v_lshl_add_u32 v{T0}, v{T1}, 8, v{T0}")
    a(f"v_xor_b32 v{T1}, v1, v2")
    a(f"v_lshl_add_u32 v{vKa}, v{T1}, 4, v{T0}")
    for jj in range(1, 4):
        a(f"v_xor_b32 v{vKa+jj}, {jj*64}, v{vKa}")
    a(f"s_add_u32 {sT2}, {sT2}, 16384")
    a(f"v_lshl_add_u32 v{vVa}, v0, 4, {sT2}")
    a(f"s_mov_b32 {sT2}, 0x01000100")
    a(f"s_mov_b32 {sT3}, 0x03020302")
    a(f"s_mov_b32 {sScale}, {SCALE}")
    a(f"s_mov_b32 {sLg}, {LOG2E}")
    a("s_waitcnt vmcnt(9)")
    a(f"s_cmp_eq_u32 {sCw}, 1")
    a("s_cbranch_scc0 L_noarrive")
    a(f"s_lshl_b32 {sT1}, {sG}, 3")
    a(f"v_mov_b32 v{T0}, {sT1}")
    a("s_mov_b64 exec, 1")
    a(f"global_atomic_add v{T0}, v{vOne}, {DBG}")
    a("s_mov_b64 exec, -1")
    stamp(2)
    a("L_noarrive:")
    for n in range(9):
        a(f"v_perm_b32 v{T0}, v{vX + n//2}, v{vX + n//2}, {sT3 if n & 1 else sT2}")
        for m in range(4):
            a(f"v_and_b32 v{vD+4*n+m}, v{T0}, v{vM+m}")
    a(f"s_lshl_b32 {sT2}, {sCw}, 10")
    a(f"s_add_u32 {sT2}, {sT2}, {MISC + RED}")
    a(f"v_lshl_add_u32 v{T0}, v0, 4, {sT2}")
    a("s_waitcnt vmcnt(1)")
    a(f"s_cmp_eq_u32 {sCw}, 1")
    a("s_cbranch_scc1 L_wqok")
    a("s_waitcnt vmcnt(0)")
    a("L_wqok:")
    for n in range(9):
        a(f"v_mfma_f32_16x16x32_bf16 v[{vAcc}:{vAcc+3}], v[{vD+4*n}:{vD+4*n+3}], v[{vKd+4*n}:{vKd+4*n+3}], {'0' if n == 0 else f'v[{vAcc}:{vAcc+3}]'}")
    a(f"ds_write_b128 v{T0}, v[{vAcc}:{vAcc+3}]")
    flag((f"v{vCwA}", F_QRED), f"v{vOne}")
    stamp(3)
    a(f"s_cmp_eq_u32 {sCw}, 0")
    a("s_cbranch_scc1 L_qpub")
    a(f"s_cmp_eq_u32 {sCw}, 2")
    a("s_cbranch_scc1 L_qgather")
    a(f"s_cmp_eq_u32 {sCw}, 3")
    a("s_cbranch_scc1 L_gate")
    a("L_qwait:")
    a(f"v_bfe_u32 v{T0}, v0, 3, 1")
    a(f"v_lshl_add_u32 v{T0}, v{T0}, 8, {vMisc}")
    a(f"v_lshl_add_u32 v{T0}, v2, 4, v{T0}")
    a(f"v_mov_b32 v{vMax}, 0xff7fffff")
    a(f"v_mov_b32 v{vSum}, 0")
    for r in range(4):
        a(f"v_mov_b32 v{vAcc+r}, 0")
    a(f"s_mov_b32 {sLand}, 0")
    poll1(F_QRDY, sLand, 1, f"v{T1}")
    for jj in range(4):
        a(f"ds_read_b128 v[{vQ+4*jj}:{vQ+4*jj+3}], v{T0} offset:{QBF + jj*64}")
    stamp(4)
    a(f"s_mov_b32 {sLand}, 0")
    a(f"s_lshl_b32 {sNeed}, {sCw}, 2")
    a(f"s_add_u32 {sNeed}, {sNeed}, 4")
    a(f"s_mov_b32 {sRo}, 0")
    a(f"s_mov_b32 {sRh}, 1")
    a("s_waitcnt lgkmcnt(0)")

    a("L_tile:")
    for jj in range(4):
        a(f"v_add_u32 v{vCur+jj}, {sRo}, v{vKa+jj}")
    a(f"v_add_u32 v{vCur+4}, {sRo}, v{vVa}")
    poll1(F_LANDED, sLand, sNeed, f"v{T1}")
    for jj in range(4):
        a(f"ds_read_b128 v[{vKd+4*jj}:{vKd+4*jj+3}], v{vCur+jj}")
    a(f"s_add_u32 {sNeed}, {sNeed}, 16")
    for jj in range(4):
        a(f"s_waitcnt lgkmcnt({3-jj})")
        a(f"v_mfma_f32_16x16x32_bf16 v[{vS}:{vS+3}], v[{vKd+4*jj}:{vKd+4*jj+3}], v[{vQ+4*jj}:{vQ+4*jj+3}], {'0' if jj == 0 else f'v[{vS}:{vS+3}]'}")
    if emul:
        for r in range(4):
            rnd(f"v{vS+r}", f"v{vS+r}")
    for r in range(4):
        a(f"v_mul_f32 v{vS+r}, {sScale}, v{vS+r}")
    if emul:
        for r in range(4):
            rnd(f"v{vS+r}", f"v{vS+r}")
    a(f"v_max3_f32 v{T0}, v{vS}, v{vS+1}, v{vS+2}")
    a(f"v_max_f32 v{T0}, v{T0}, v{vS+3}")
    a(f"v_cmp_gt_f32 vcc, v{T0}, v{vMax}")
    a("s_cbranch_vccz L_nors")
    xrow("v_max_f32", f"v{T0}", f"v{T1}")
    a(f"v_max_f32 v{T0}, v{T0}, v{vMax}")
    a(f"v_sub_f32 v{T1}, v{vMax}, v{T0}")
    a(f"v_mul_f32 v{T1}, {sLg}, v{T1}")
    a(f"v_exp_f32 v{T1}, v{T1}")
    a(f"v_mov_b32 v{vMax}, v{T0}")
    a(f"v_mul_f32 v{vSum}, v{vSum}, v{T1}")
    for r in range(4):
        a(f"v_mul_f32 v{vAcc+r}, v{vAcc+r}, v{T1}")
    a("L_nors:")
    for r in range(4):
        a(f"v_sub_f32 v{vS+r}, v{vS+r}, v{vMax}")
    for r in range(4):
        a(f"v_mul_f32 v{vS+r}, {sLg}, v{vS+r}")
    for r in range(4):
        a(f"v_exp_f32 v{vS+r}, v{vS+r}")
    a(f"v_add_f32 v{T0}, v{vS}, v{vS+1}")
    a(f"v_add_f32 v{T1}, v{vS+2}, v{vS+3}")
    for r in range(4):
        a(f"v_cvt_pk_bf16_f32 v{vS+r}, v{vS+r}, v{vS+r}")
    a(f"v_add_f32 v{T0}, v{T0}, v{T1}")
    a(f"v_add_f32 v{vSum}, v{vSum}, v{T0}")
    for r in range(4):
        for m in range(4):
            a(f"v_and_b32 v{vB+4*r+m}, v{vS+r}, v{vM+m}")
    poll1(F_LANDED, sLand, sNeed, f"v{T1}")
    for r in range(4):
        a(f"ds_read_b128 v[{vVd+4*r}:{vVd+4*r+3}], v{vCur+4} offset:{r*1024}")
    a(f"v_mov_b32 v{T0}, {sRh}")
    flag((f"v{vCwA}", F_FREED), f"v{T0}")
    a(f"s_add_u32 {sNeed}, {sNeed}, 16")
    a(f"s_add_u32 {sRo}, {sRo}, 32768")
    a(f"s_cmp_eq_u32 {sRo}, {NR*32768}")
    a(f"s_cselect_b32 {sRo}, 0, {sRo}")
    a(f"s_add_u32 {sRh}, {sRh}, 1")
    a(f"s_cmp_lg_u32 {sRh}, 65")
    for r in range(4):
        a(f"s_waitcnt lgkmcnt({4-r})")
        a(f"v_mfma_f32_16x16x32_bf16 v[{vAcc}:{vAcc+3}], v[{vVd+4*r}:{vVd+4*r+3}], v[{vB+4*r}:{vB+4*r+3}], v[{vAcc}:{vAcc+3}]")
    a("s_cbranch_scc1 L_tile")

    xrow("v_add_f32", f"v{vSum}", f"v{T1}")
    a(f"s_lshl_b32 {sT2}, {sCw}, 10")
    a(f"s_add_u32 {sT2}, {sT2}, {MISC + RED}")
    a(f"v_and_b32 v{T0}, 7, v0")
    a(f"v_lshl_add_u32 v{T0}, v{T0}, 2, {sT2}")
    a(f"v_lshl_add_u32 v{T0}, v2, 7, v{T0}")
    a(f"v_bfe_u32 v{T1}, v0, 3, 1")
    a(f"v_lshl_add_u32 v{T0}, v{T1}, 9, v{T0}")
    a(f"s_lshl_b32 {sT2}, {sCw}, 3")
    a(f"s_add_u32 {sT2}, {sT2}, {MISC + ML}")
    a(f"v_lshl_add_u32 v{T1}, v{T1}, 5, {sT2}")
    a(f"ds_write2_b32 v{T0}, v{vAcc}, v{vAcc+1} offset0:0 offset1:8")
    a(f"ds_write2_b32 v{T0}, v{vAcc+2}, v{vAcc+3} offset0:16 offset1:24")
    a("s_mov_b64 exec, 0x101")
    a(f"ds_write_b64 v{T1}, v[{vMax}:{vMax+1}]")
    flag((f"v{vCwA}", F_DONE), f"v{vOne}")
    stamp(5)
    a(f"s_cmp_eq_u32 {sCw}, 3")
    a("s_cbranch_scc1 L_merge")

    vW, vO, vML, vA, vY = 104, 36, 52, 56, 64
    a(f"v_bfe_u32 v{T0}, v0, 2, 2")
    a(f"v_lshl_add_u32 v{T0}, v2, 3, v{T0}")
    a(f"v_mul_u32_u24 v{T0}, 288, v{T0}")
    a(f"v_and_b32 v{T1}, 3, v0")
    a(f"v_lshl_add_u32 v{T0}, v{T1}, 3, v{T0}")
    a(f"s_mul_i32 {sT2}, {sCw}, 96")
    a(f"v_add_u32 v{T0}, {sT2}, v{T0}")
    a(f"s_lshl_b32 {sT2}, {sG}, 1")
    a(f"s_add_u32 {sT2}, {sT2}, {sH}")
    a(f"s_lshl_b32 {sT1}, {sT2}, 6")
    a(f"s_add_u32 {sT1}, {sT1}, {S1ML}")
    a(f"s_lshl_b32 {sT2}, {sT2}, 12")
    a(f"s_add_u32 {sT2}, {sT2}, {S1O}")
    a(f"v_and_b32 v{T1}, 7, v0")
    a(f"v_lshl_add_u32 v{vCur+1}, v{T1}, 3, {sT1}")
    a(f"v_lshl_add_u32 v{vCur}, v{T1}, 9, {sT2}")
    a(f"v_bfe_u32 v{T1}, v0, 3, 1")
    a(f"v_lshl_add_u32 v{vCur}, v{T1}, 8, v{vCur}")
    a(f"v_lshl_add_u32 v{vCur}, v2, 5, v{vCur}")
    s2_base(sT2)
    a(f"s_mul_i32 {sT1}, {sCw}, {3*4096}")
    a(f"s_add_u32 {sT2}, {sT2}, {sT1}")
    a(f"v_lshl_add_u32 v{vCur+2}, v1, 2, {sT2}")
    a(f"v_and_b32 v{T1}, 1, v2")
    a(f"v_mul_u32_u24 v{T1}, {36*4096}, v{T1}")
    a(f"v_add_u32 v{vCur+2}, v{vCur+2}, v{T1}")
    a(f"v_add_u32 v{vCur+3}, 0x2000, v{vCur+2}")
    poll1(F_LANDED, sLand, 0x1000, f"v{T1}")
    for tt in range(3):
        for ks in range(4):
            for hf in range(2):
                r = vW + (tt * 4 + ks) * 4 + hf * 2
                a(f"ds_read_b64_tr_b16 v[{r}:{r+1}], v{T0} offset:{ks*32*288 + hf*4*288 + tt*32}")
    a("L_gpoll:")
    for k, off in enumerate((0, 16, 128, 144)):
        a(f"global_load_dwordx4 v[{vO+4*k}:{vO+4*k+3}], v{vCur}, {WS} offset:{off} sc1")
    a(f"global_load_dwordx2 v[{vML}:{vML+1}], v{vCur+1}, {WS} sc1")
    a("s_waitcnt vmcnt(0)")
    anyempty(range(vO, vO + 18), f"v{T0}")
    a("s_cbranch_vccz L_gok")
    retry("L_gpoll", False)
    a("L_gok:")
    stamp(6)
    qp = ("quad_perm:[1,0,3,2] row_mask:0xf bank_mask:0xf", "quad_perm:[2,3,0,1] row_mask:0xf bank_mask:0xf")
    a(f"v_max_f32_dpp v{T0}, v{vML}, v{vML} {qp[0]}")
    a(f"v_max_f32_dpp v{T0}, v{T0}, v{T0} {qp[1]}")
    a(f"v_sub_f32 v{T0}, v{vML}, v{T0}")
    a(f"v_mul_f32 v{T0}, {sLg}, v{T0}")
    a(f"v_exp_f32 v{T0}, v{T0}")
    a(f"v_mul_f32 v{T1}, v{T0}, v{vML+1}")
    for k in range(16):
        a(f"v_mul_f32 v{vO+k}, v{vO+k}, v{T0}")
    for p in qp:
        a(f"v_add_f32_dpp v{T1}, v{T1}, v{T1} {p}")
        if p == qp[1]:
            a(f"v_rcp_f32 v{T1}, v{T1}")
        for k in range(16):
            a(f"v_add_f32_dpp v{vO+k}, v{vO+k}, v{vO+k} {p}")
    for k in range(16):
        a(f"v_mul_f32 v{vO+k}, v{vO+k}, v{T1}")
    for k in range(8):
        a(f"v_cvt_pk_bf16_f32 v{vA+k}, v{vO+2*k}, v{vO+2*k+1}")
    a("s_waitcnt lgkmcnt(0)")
    for aa in range(2):
        for tt in range(3):
            for x in range(2):
                y = vY + (tt * 2 + x) * 4
                w = vW + (tt * 4 + aa + 2 * x) * 4
                a(f"v_mfma_f32_16x16x32_bf16 v[{y}:{y+3}], v[{vA+4*aa}:{vA+4*aa+3}], v[{w}:{w+3}], {'0' if aa == 0 else f'v[{y}:{y+3}]'}")
    for tt in range(3):
        y = vY + tt * 8
        a(f"v_permlane32_swap_b32 v{y+4}, v{y+1}")
    for tt in range(3):
        y = vY + tt * 8
        a(f"v_add_f32 v{y}, v{y}, v{y+1}")
        a(f"v_min_u32 v{y}, -2, v{y}")
    a("s_mov_b32 exec_hi, 0")
    a(f"global_store_dword v{vCur+2}, v{vY}, {WS} sc1")
    a(f"global_store_dword v{vCur+3}, v{vY+8}, {WS} offset:-4096 sc1")
    a(f"global_store_dword v{vCur+3}, v{vY+16}, {WS} sc1")
    finish()

    a("L_merge:")
    s1_addr(vCur, vCur + 1)
    a(f"v_lshl_add_u32 v{T0}, v0, 4, {vMisc}")
    a(f"v_lshrrev_b32 v{T1}, 5, v0")
    a(f"v_lshl_add_u32 v{T1}, v{T1}, 5, {vMisc}")
    a("L_mpoll:")
    a(f"ds_read_b128 v[60:63], {vMisc} offset:{F_DONE}")
    a(f"ds_read_b128 v[52:55], v{T1} offset:{ML}")
    a(f"ds_read_b128 v[56:59], v{T1} offset:{ML+16}")
    for k in range(4):
        a(f"ds_read_b128 v[{36+4*k}:{39+4*k}], v{T0} offset:{RED + k*1024}")
    a("s_waitcnt lgkmcnt(6)")
    min4(60, sT0)
    a(f"s_cmp_ge_i32 {sT0}, 1")
    a("s_cbranch_scc1 L_mok")
    a("s_waitcnt lgkmcnt(0)")
    retry("L_mpoll", False)
    a("L_mok:")
    a("s_waitcnt lgkmcnt(4)")
    a("v_max3_f32 v64, v52, v54, v56")
    a("v_max_f32 v64, v64, v58")
    for k in range(4):
        a(f"v_sub_f32 v{60+k}, v{52+2*k}, v64")
    for k in range(4):
        a(f"v_mul_f32 v{60+k}, {sLg}, v{60+k}")
    for k in range(4):
        a(f"v_exp_f32 v{60+k}, v{60+k}")
    a("v_mul_f32 v65, v60, v53")
    for k in range(1, 4):
        a(f"v_fmac_f32 v65, v{60+k}, v{53+2*k}")
    a("s_waitcnt lgkmcnt(0)")
    for r in range(4):
        a(f"v_mul_f32 v{36+r}, v60, v{36+r}")
    for k in range(1, 4):
        for r in range(4):
            a(f"v_fmac_f32 v{36+r}, v{60+k}, v{36+4*k+r}")
    for r in (36, 37, 38, 39, 64, 65):
        a(f"v_min_u32 v{r}, -2, v{r}")
    a(f"global_store_dwordx4 v{vCur}, v[36:39], {WS} sc1")
    a("s_mov_b32 exec_lo, 1")
    a("s_mov_b32 exec_hi, 1")
    a(f"global_store_dwordx2 v{vCur+1}, v[64:65], {WS} sc1")
    a("s_mov_b64 exec, -1")
    stamp(2)
    a(f"s_cmp_ge_u32 {sL}, 72")
    a("s_cbranch_scc1 L_rdone")
    a(f"v_and_b32 v{T0}, 31, v0")
    a(f"v_lshlrev_b32 v{T0}, 3, v{T0}")
    a(f"s_lshl_b32 {sT2}, {sL}, 12")
    a(f"s_add_u32 {sT2}, {sT2}, {S2}")
    a(f"v_lshl_add_u32 v{vCur+2}, v0, 2, {sT2}")
    a(f"s_lshl_b32 {sT2}, {sL}, 5")
    a(f"v_lshl_add_u32 v{vCur+3}, v1, 1, {sT2}")
    a("L_rall:")
    a(f"global_load_dword v{T1}, v{T0}, {DBG} sc1")
    a("s_waitcnt vmcnt(0)")
    a(f"v_cmp_gt_u32 vcc, 8, v{T1}")
    a("s_cbranch_vccz L_rpoll")
    retry("L_rall")
    a("L_rpoll:")
    for k in range(16):
        a(f"global_load_dword v{40+k}, v{vCur+2}, {WS} offset:{k*256} sc1")
    a("s_waitcnt vmcnt(0)")
    anyempty(range(40, 56), f"v{T0}")
    a("s_cbranch_vccz L_rok")
    retry("L_rpoll", False)
    a("L_rok:")
    stamp(6)
    for st in (1, 2, 4):
        for k in range(0, 16, 2 * st):
            a(f"v_add_f32 v{40+k}, v{40+k}, v{40+k+st}")
    a("v_permlane32_swap_b32 v40, v48")
    a("v_add_f32 v40, v40, v48")
    xrow("v_add_f32", "v40", f"v{T1}", (16,))
    rnd("v40", "v40")
    a(f"v_mul_f32 v40, v40, v{vCoef}")
    rnd("v40", "v40")
    xrow("v_add_f32", "v40", f"v{T1}", (32,))
    rnd("v40", "v40")
    a("s_mov_b64 exec, 0xffff")
    a(f"global_store_short_d16_hi v{vCur+3}, v40, {OUT} sc1")
    a("L_rdone:")
    finish()

    a("L_clear:")
    s1_addr(vB, vB + 1)
    a(f"s_lshl_b32 {sT2}, {sL}, 10")
    a(f"v_lshl_add_u32 v{vB+2}, v0, 4, {sT2}")
    s2_base(sT2)
    a(f"v_and_b32 v{vB+3}, 3, v0")
    a(f"v_lshl_add_u32 v{vB+3}, v{vB+3}, 4, {sT2}")
    a(f"v_lshrrev_b32 v{vB+4}, 2, v0")
    a(f"v_lshl_add_u32 v{vB+3}, v{vB+4}, 12, v{vB+3}")
    a(f"v_add_u32 v{vB+4}, {36*4096}, v{vB+3}")
    for r in range(4):
        a(f"v_mov_b32 v{vB+8+r}, -1")
    a("s_waitcnt lgkmcnt(0)")
    a("s_barrier")
    a(f"global_store_dwordx4 v{vB+2}, v[{vB+8}:{vB+11}], {WS} sc1")
    a(f"global_store_dwordx4 v{vB}, v[{vB+8}:{vB+11}], {WS} sc1")
    a("s_mov_b32 exec_hi, 15")
    a(f"global_store_dwordx4 v{vB+3}, v[{vB+8}:{vB+11}], {WS} sc1")
    a(f"global_store_dwordx4 v{vB+4}, v[{vB+8}:{vB+11}], {WS} sc1")
    a("s_mov_b32 exec_lo, 1")
    a("s_mov_b32 exec_hi, 1")
    a(f"global_store_dwordx2 v{vB+1}, v[{vB+8}:{vB+9}], {WS} sc1")
    a("s_mov_b64 exec, -1")
    a("s_branch L_clear_back")

    a("L_qpub:")
    a(f"s_lshl_b32 {sT2}, {sL}, 10")
    a(f"v_lshl_add_u32 v{T1}, v0, 4, {sT2}")
    a("L_qpub_poll:")
    a(f"ds_read_b128 v[60:63], {vMisc} offset:{F_QRED}")
    for k in range(1, 4):
        a(f"ds_read_b128 v[{36+4*k}:{39+4*k}], v{T0} offset:{k*1024}")
    a("s_waitcnt lgkmcnt(0)")
    min4(60, sT0)
    a(f"s_cmp_ge_i32 {sT0}, 1")
    a("s_cbranch_scc1 L_qpub_ok")
    retry("L_qpub_poll", False)
    a("L_qpub_ok:")
    for r in range(4):
        a(f"v_add_f32 v{40+r}, v{vAcc+r}, v{40+r}")
        a(f"v_add_f32 v{44+r}, v{44+r}, v{48+r}")
    for r in range(4):
        a(f"v_add_f32 v{40+r}, v{40+r}, v{44+r}")
        a(f"v_min_u32 v{40+r}, -2, v{40+r}")
    a(f"global_store_dwordx4 v{T1}, v[40:43], {WS} sc1")
    stamp(2)
    a("s_branch L_qwait")

    a("L_qgather:")
    a(f"s_lshl_b32 {sT1}, {sG}, 3")
    a(f"v_mov_b32 v{T0}, {sT1}")
    a(f"s_lshl_b32 {sT2}, {sG}, 13")
    a(f"s_lshr_b32 {sT3}, {sJ}, 2")
    a(f"s_lshl_b32 {sT3}, {sT3}, 9")
    a(f"s_add_u32 {sT2}, {sT2}, {sT3}")
    a(f"s_add_u32 {sT2}, {sT2}, 4096")
    a(f"v_and_b32 v{T2}, 31, v0")
    a(f"v_lshl_add_u32 v{T2}, v{T2}, 4, {sT2}")
    a(f"v_lshrrev_b32 v{T3}, 5, v0")
    a(f"v_lshl_add_u32 v{T2}, v{T3}, 10, v{T2}")
    a(f"v_lshl_add_u32 v{T3}, v{T3}, 8, {vMisc}")
    a(f"v_lshl_add_u32 v{T3}, v1, 4, v{T3}")
    a(f"v_and_b32 v{T1}, 1, v2")
    a(f"v_lshl_add_u32 v{T3}, v{T1}, 3, v{T3}")
    a("L_qcnt:")
    a("s_mov_b64 exec, 1")
    a(f"global_load_dword v{T1}, v{T0}, {DBG} sc1")
    a("s_mov_b64 exec, -1")
    a("s_waitcnt vmcnt(0)")
    a(f"v_readfirstlane_b32 {sT0}, v{T1}")
    a(f"s_cmp_ge_u32 {sT0}, 8")
    a("s_cbranch_scc1 L_qg0")
    retry("L_qcnt")
    a("L_qg0:")
    stamp(2)
    a("L_qg:")
    for k in range(4):
        a(f"global_load_dwordx4 v[{36+4*k}:{39+4*k}], v{T2}, {WS} offset:{k*2048 - 4096} sc1")
    a("s_waitcnt vmcnt(0)")
    anyempty(range(36, 52), f"v{T0}")
    a("s_cbranch_vccz L_qg_ok")
    retry("L_qg", False)
    a("L_qg_ok:")
    for r in range(4):
        a(f"v_add_f32 v{36+r}, v{36+r}, v{40+r}")
        a(f"v_add_f32 v{44+r}, v{44+r}, v{48+r}")
    for r in range(4):
        a(f"v_add_f32 v{36+r}, v{36+r}, v{44+r}")
    a("v_cvt_pk_bf16_f32 v36, v36, v37")
    a("v_cvt_pk_bf16_f32 v37, v38, v39")
    a(f"ds_write_b64 v{T3}, v[36:37] offset:{QBF}")
    flag((vMisc, F_QRDY), f"v{vOne}")
    a("s_branch L_qwait")

    a("L_gate:")
    a(f"s_cmp_ge_u32 {sL}, 72")
    a("s_cbranch_scc1 L_qwait")
    a(f"s_cmp_ge_u32 {sL}, 36")
    a(f"s_cselect_b32 {sT0}, 1152, 0")
    a(f"s_add_u32 s24, s20, {sT0}")
    a("s_addc_u32 s25, s21, 0")
    a("s_mov_b32 s26, 1152")
    a("s_mov_b64 s[28:29], s[12:13]")
    a("s_mov_b32 s30, 1152")
    a("s_mov_b32 s31, 0x20000")
    a(f"v_lshlrev_b32 v{T0}, 3, v0")
    for k in range(3):
        a(f"buffer_load_dwordx2 v[{36+2*k}:{37+2*k}], v{T0}, s[24:27], 0 offen offset:{k*512}")
        a(f"buffer_load_dwordx2 v[{44+2*k}:{45+2*k}], v{T0}, s[28:31], 0 offen offset:{k*512}")
    a(f"v_mov_b32 v{T1}, 0")
    a("s_waitcnt vmcnt(0)")
    for k in range(6):
        a(f"v_lshlrev_b32 v52, 16, v{36+k}")
        a(f"v_lshlrev_b32 v53, 16, v{44+k}")
        a(f"v_and_b32 v54, 0xffff0000, v{36+k}")
        a(f"v_and_b32 v55, 0xffff0000, v{44+k}")
        a("v_mul_f32 v52, v52, v53")
        a("v_mul_f32 v54, v54, v55")
        rnd("v52", "v52")
        rnd("v54", "v54")
        a(f"v_add_f32 v{T1}, v{T1}, v52")
        a(f"v_add_f32 v{T1}, v{T1}, v54")
    for n in (1, 2, 4, 8):
        a(f"v_add_f32_dpp v{T1}, v{T1}, v{T1} row_ror:{n} row_mask:0xf bank_mask:0xf")
    xrow("v_add_f32", f"v{T1}", f"v{T0}")
    rnd(f"v{T1}", f"v{T1}")
    a(f"v_mul_f32 v{T1}, {sLg}, v{T1}")
    a(f"v_exp_f32 v{T1}, -v{T1}")
    a(f"v_add_f32 v{T1}, 1.0, v{T1}")
    a(f"v_rcp_f32 v{T1}, v{T1}")
    rnd(f"v{T1}", f"v{T1}")
    a(f"v_sub_f32 v{T0}, 1.0, v{T1}")
    rnd(f"v{T0}", f"v{T0}")
    a("v_cmp_gt_u32 vcc, 32, v0")
    a(f"v_cndmask_b32 v{vCoef}, v{T0}, v{T1}, vcc")
    a("s_branch L_qwait")
    a("L_exit:")
    a("s_endpgm")

    body, added = pad(L)
    nv = 152
    out = [HEADER.rstrip(), f"; @launch grid=(256,1,1) block=(320,1,1) lds={LDS}",
           '.amdgcn_target "amdgcn-amd-amdhsa--gfx950"', ".text", f".globl {NAME}_kernel", ".p2align 8",
           f".type {NAME}_kernel,@function"]
    out += [l if l.endswith(":") else "    " + l for l in body]
    out += ['.section .rodata,"a"', ".p2align 6", f".amdhsa_kernel {NAME}_kernel",
            f"  .amdhsa_next_free_vgpr {nv}", "  .amdhsa_next_free_sgpr 96", f"  .amdhsa_accum_offset {nv}",
            "  .amdhsa_group_segment_fixed_size 0", "  .amdhsa_kernarg_size 112", "  .amdhsa_user_sgpr_count 2",
            "  .amdhsa_user_sgpr_kernarg_segment_ptr 1", "  .amdhsa_system_sgpr_workgroup_id_x 1",
            "  .amdhsa_float_denorm_mode_32 3", ".end_amdhsa_kernel"]
    return "\n".join(out) + "\n"

if __name__ == "__main__":
    kw = eval("dict(" + (sys.argv[2] if len(sys.argv) > 2 else "") + ")")
    open(sys.argv[1], "w").write(gen(**kw))
```

```python
import sys
sys.path.insert(0, "work")
from hazard import pad

NAME = "gated_mix__gqa_block_cached__gqa_block_cached__decode"
HEADER = open("cdna_kernels/" + NAME + ".s.ref").read().split("; Override launch")[0]

QBOX, S1O, S1ML, S2, STAMP = 0, 0x40000, 0x80000, 0x90000, 0x100000
LOG2E = 0x3FB8AA3B
SCALE = 0x3DB504F3

def gen(W=20, g=(8, 9), t=(12, 13, 10, 11), c=(20, 21), wgmap="plain", stamps=False, emul=True, NR=4, wo_per=2, poll_sleep=1, padto=0):
    L = []
    a = L.append
    used = list(g) + list(t) + list(c)
    assert len(set(used)) == 8
    rest = [b for b in range(8, 22) if b not in used]
    mask = sum(1 << b for b in rest)
    MISC = NR * 32768
    F_FREED, F_QRED, F_DONE, F_LANDED, F_QRDY, ML, RED, QBF = 0, 16, 32, 48, 52, 128, 256, 4352
    LDS = MISC + 5120
    uid = [0]
    def lab(p):
        uid[0] += 1
        return f"L_{p}{uid[0]}"

    sL, sG, sKvh, sJ, sH, sQ, sCw, sTmo = "s22", "s23", "s36", "s37", "s38", "s39", "s40", "s41"
    sT0, sT1, sT2, sT3 = "s42", "s43", "s44", "s45"
    K_, V_, WQ, WO, GATE, OUT, DBG, WS, X_ = "s[4:5]", "s[6:7]", "s[8:9]", "s[10:11]", "s[12:13]", "s[14:15]", "s[16:17]", "s[18:19]", "s[20:21]"
    vMisc = "v3"
    nst = [0]
    def stamp(i):
        if stamps:
            a(f"s_memrealtime s[{64+2*i}:{65+2*i}]")
    def finish():
        if stamps:
            stamp(7)
            a("s_waitcnt lgkmcnt(0)")
            a("s_mul_i32 s42, s2, 5")
            a("s_add_u32 s42, s42, s3")
            a("s_lshl_b32 s42, s42, 5")
            a(f"s_add_u32 s42, s42, {STAMP}")
            a("s_mov_b64 exec, 1")
            a("v_mov_b32 v1, s42")
            for i in range(8):
                a(f"v_mov_b32 v{8+i}, s{64+2*i}")
            a(f"global_store_dwordx4 v1, v[8:11], {WS}")
            a(f"global_store_dwordx4 v1, v[12:15], {WS} offset:16")
        a("s_endpgm")
    def retry(loop, sleep=True):
        if sleep and poll_sleep:
            a(f"s_sleep {poll_sleep}")
        a(f"s_sub_u32 {sTmo}, {sTmo}, 1")
        a(f"s_cbranch_scc0 {loop}")
        a("s_endpgm")
    def flag(off, v):
        a("s_mov_b64 exec, 1")
        a(f"ds_write_b32 {off[0]}, {v} offset:{off[1]}")
        a("s_mov_b64 exec, -1")
    def poll1(off, sval, need, vt):
        lp, ok = lab("p"), lab("ok")
        a(f"s_cmp_ge_i32 {sval}, {need}")
        a(f"s_cbranch_scc1 {ok}")
        a(f"{lp}:")
        a(f"ds_read_b32 {vt}, {vMisc} offset:{off}")
        a("s_waitcnt lgkmcnt(0)")
        a(f"v_readfirstlane_b32 {sval}, {vt}")
        a(f"s_cmp_ge_i32 {sval}, {need}")
        a(f"s_cbranch_scc1 {ok}")
        retry(lp)
        a(f"{ok}:")
    def min4(r, s):
        a(f"v_min3_u32 v{r}, v{r}, v{r+1}, v{r+2}")
        a(f"v_min_u32 v{r}, v{r}, v{r+3}")
        a(f"v_readfirstlane_b32 {s}, v{r}")
    def anyempty(rs, vt):
        rs = list(rs)
        a(f"v_max3_u32 {vt}, v{rs[0]}, v{rs[1]}, v{rs[2]}")
        k = 3
        while k < len(rs):
            if k + 1 < len(rs):
                a(f"v_max3_u32 {vt}, {vt}, v{rs[k]}, v{rs[k+1]}"); k += 2
            else:
                a(f"v_max_u32 {vt}, {vt}, v{rs[k]}"); k += 1
        a(f"v_cmp_eq_u32 vcc, -1, {vt}")
    def rnd(d, s):
        a(f"v_cvt_pk_bf16_f32 {d}, 0, {s}")
    def xrow(op, x, tmp, which=(32, 16)):
        for n in which:
            a(f"v_mov_b32 {tmp}, {x}")
            a(f"v_permlane{n}_swap_b32 {tmp}, {x}")
            a(f"{op} {x}, {tmp}, {x}")

    a(f"{NAME}_kernel:")
    a("s_cmp_ge_u32 s2, 256")
    a("s_cbranch_scc1 L_exit")
    if wgmap == "plain":
        a(f"s_mov_b32 {sL}, s2")
    else:
        a(f"s_and_b32 {sL}, s2, 7")
        a(f"s_lshl_b32 {sL}, {sL}, 5")
        a(f"s_lshr_b32 {sT0}, s2, 3")
        a(f"s_add_u32 {sL}, {sL}, {sT0}")
    a(f"s_cmp_ge_u32 {sL}, 128")
    a(f"s_cselect_b32 {sT0}, 48, 8")
    a(f"s_load_dwordx8 s[4:11], s[0:1], {sT0}")
    a("s_load_dwordx8 s[12:19], s[0:1], 80")
    a("s_load_dwordx2 s[20:21], s[0:1], 0")
    if stamps:
        for i in range(8):
            a(f"s_mov_b32 s{64+2*i}, 0")
    stamp(0)
    if padto:
        a("s_memrealtime s[60:61]")
    a("v_lshrrev_b32 v1, 6, v0")
    a("v_and_b32 v0, 63, v0")
    a("v_readfirstlane_b32 s3, v1")
    a(f"s_lshr_b32 {sG}, {sL}, 3")
    a(f"s_and_b32 {sKvh}, {sG}, 15")
    a(f"s_and_b32 {sJ}, {sL}, 7")
    a(f"s_and_b32 {sH}, {sL}, 1")
    a(f"s_lshr_b32 {sQ}, {sJ}, 1")
    a(f"s_mov_b32 {sTmo}, 0x400000")
    a(f"v_mov_b32 {vMisc}, {MISC}")
    a("v_and_b32 v1, 15, v0")
    a("v_lshrrev_b32 v2, 4, v0")
    a("s_cmp_lg_u32 s3, 0")
    a("s_cbranch_scc1 L_consumer")

    sBase, sRnd, sRing, sRho, sSo, sOff = "s46", "s47", "s48", "s49", "s50", "s51"
    vV, vK, vCnt, vF, vWo = 4, 5, 9, 12, 16
    a("s_setprio 3")
    a(f"v_lshl_add_u32 v10, v1, 2, {vMisc}")
    a("v_mov_b32 v11, 0")
    a("ds_write_b32 v10, v11")
    a("v_and_b32 v10, 1, v2")
    a(f"v_lshlrev_b32 v10, {g[0]}, v10")
    a("v_lshrrev_b32 v11, 1, v2")
    a(f"v_lshl_add_u32 v10, v11, {g[1]}, v10")
    a(f"v_lshl_add_u32 v{vV}, v1, 4, v10")
    a(f"v_lshlrev_b32 v11, 6, v2")
    a(f"v_xor_b32 v{vK}, v11, v{vV}")
    for u in range(1, 4):
        a(f"v_xor_b32 v{vK+u}, {u*16}, v{vK}")
    first_pub = (W - 1) % 4
    a(f"v_mov_b32 v{vCnt}, {first_pub - W + 1 - 4}")
    for i in range(4):
        a(f"v_mov_b32 v{vF+i}, 0")
    a(f"s_lshr_b32 {sBase}, {sJ}, 2")
    a(f"s_lshl_b32 {sBase}, {sBase}, 4")
    a(f"s_add_u32 {sBase}, {sBase}, {sKvh}")
    a(f"s_lshl_b32 {sBase}, {sBase}, 22")
    for i, b in enumerate(c):
        a(f"s_bfe_u32 {sT0}, {sL}, {i | (1 << 16)}")
        a(f"s_lshl_b32 {sT0}, {sT0}, {b}")
        a(f"s_add_u32 {sBase}, {sBase}, {sT0}")
    a(f"s_mov_b32 {sRnd}, 0")
    a(f"s_mov_b32 {sRing}, 0")
    a(f"s_mov_b32 {sRho}, {1 - NR}")
    for r, n in ((24, 0x8000000), (28, 0x8000000), (32, 4096 * 1152)):
        a(f"s_mov_b32 s{r+2}, {n}")
        a(f"s_mov_b32 s{r+3}, 0x20000")
    a("s_waitcnt lgkmcnt(0)")
    a("s_mov_b64 s[24:25], s[4:5]")
    a("s_mov_b64 s[28:29], s[6:7]")
    a("s_mov_b64 s[32:33], s[10:11]")
    a("s_barrier")
    stamp(1)
    def check_freed(need):
        lp, ok = lab("fr"), lab("frok")
        a(f"{lp}:")
        a("s_waitcnt lgkmcnt(0)")
        min4(vF, sT0)
        a(f"s_cmp_ge_i32 {sT0}, {need}")
        a(f"s_cbranch_scc1 {ok}")
        a(f"ds_read_b128 v[{vF}:{vF+3}], {vMisc} offset:{F_FREED}")
        if stamps:
            a("s_add_u32 s68, s68, 1")
        retry(lp)
        a(f"{ok}:")
    def publish():
        a(f"v_add_u32 v{vCnt}, 4, v{vCnt}")
        flag((vMisc, F_LANDED), f"v{vCnt}")
    a("L_round:")
    check_freed(sRho)
    a(f"s_add_u32 {sSo}, {sBase}, {sRnd}")
    a(f"s_mov_b32 m0, {sRing}")
    for n in range(32):
        j = n & 15
        off = sum(((j >> i) & 1) << t[i] for i in range(4))
        if n:
            a("s_addk_i32 m0, 0x400")
        a(f"s_add_u32 {sOff}, {sSo}, {off}")
        a(f"s_waitcnt vmcnt({W-1})")
        if n < 16:
            a(f"buffer_load_dwordx4 v{vK + (j & 3)}, s[24:27], {sOff} offen nt lds")
        else:
            a(f"buffer_load_dwordx4 v{vV}, s[28:31], {sOff} offen nt lds")
        if n % 4 == first_pub:
            publish()
        if 20 <= n < 29:
            k = n - 20
            a(f"v_add_u32 v10, {k*64}, v0")
            a(f"v_mul_u32_u24 v11, 3641, v10")
            a("v_lshrrev_b32 v11, 16, v11")
            a(f"v_mul_u32_u24 v11, 864, v11")
            a(f"v_lshl_add_u32 v{vWo+k}, v10, 4, v11")
        if n == 29:
            a(f"ds_read_b128 v[{vF}:{vF+3}], {vMisc} offset:{F_FREED}")
    a(f"s_add_u32 {sRing}, {sRing}, 32768")
    a(f"s_cmp_eq_u32 {sRing}, {NR*32768}")
    a(f"s_cselect_b32 {sRing}, 0, {sRing}")
    a(f"s_or_b32 {sRnd}, {sRnd}, {(~mask) & 0xffffffff}")
    a(f"s_add_u32 {sRnd}, {sRnd}, 1")
    a(f"s_and_b32 {sRnd}, {sRnd}, {mask}")
    a(f"s_add_i32 {sRho}, {sRho}, 1")
    a(f"s_cmp_lg_i32 {sRho}, {65 - NR}")
    a("s_cbranch_scc1 L_round")
    stamp(3)
    assert NR == 4
    check_freed(62)
    a(f"s_lshl_b32 {sSo}, {sKvh}, 1")
    a(f"s_add_u32 {sSo}, {sSo}, {sH}")
    a(f"s_mul_i32 {sSo}, {sSo}, {128*1152}")
    a(f"s_mul_i32 {sT0}, {sQ}, 288")
    a(f"s_add_u32 {sSo}, {sSo}, {sT0}")
    a("s_mov_b32 m0, 0")
    issued = 0
    def wo_load():
        nonlocal issued
        if issued:
            a("s_addk_i32 m0, 0x400")
            if issued % 9 == 0:
                a(f"s_add_u32 {sSo}, {sSo}, {32*1152}")
        a(f"buffer_load_dwordx4 v{vWo + issued % 9}, s[32:35], {sSo} offen nt lds")
        issued += 1
    for k in range(W):
        a(f"s_waitcnt vmcnt({W - 1 - k + issued})")
        if k % 4 == first_pub:
            publish()
        for _ in range(wo_per):
            if issued < 36:
                wo_load()
    stamp(4)
    while issued < 36:
        wo_load()
    a(f"v_mov_b32 v{vCnt}, 0x1000")
    a("s_waitcnt vmcnt(0)")
    flag((vMisc, F_LANDED), f"v{vCnt}")
    finish()

    vM, vKa, vVa, vCur, vOne, vCwA, vQ, vKd, vVd, vS, vB, vAcc, vMax, vSum = 4, 8, 12, 13, 18, 19, 20, 36, 52, 68, 72, 88, 92, 93
    T0, T1, T2, T3, vX, vCoef, vD = 94, 95, 96, 97, 96, 101, 104
    sLand, sNeed, sRo, sRh, sScale, sLg = "s46", "s47", "s48", "s49", "s50", "s51"
    a("L_consumer:")
    a(f"s_sub_u32 {sCw}, s3, 1")
    a(f"s_mul_i32 {sT0}, {sQ}, 144")
    a(f"s_mul_i32 {sT1}, {sCw}, 36")
    a(f"s_add_u32 {sT0}, {sT0}, {sT1}")
    a(f"s_lshl_b32 {sT1}, {sT0}, 1")
    a(f"s_lshl_b32 {sT0}, {sT0}, 13")
    a(f"s_lshl_b32 {sT2}, {sKvh}, 9")
    a(f"s_add_u32 {sT0}, {sT0}, {sT2}")
    a(f"s_lshl_b32 {sT2}, {sH}, 8")
    a(f"s_add_u32 {sT0}, {sT0}, {sT2}")
    a(f"v_bfe_u32 v{T0}, v0, 3, 1")
    a(f"v_mul_u32_u24 v{T0}, 1152, v{T0}")
    a(f"v_add_u32 v{T0}, {sT1}, v{T0}")
    a(f"v_lshl_add_u32 v{T1}, v2, 1, v{T0}")
    a(f"v_lshl_add_u32 v{T0}, v2, 4, v{T0}")
    a(f"v_lshlrev_b32 v{vCur}, 4, v1")
    a(f"v_lshl_add_u32 v{vCur+1}, v2, 13, v{vCur}")
    a(f"v_lshl_add_u32 v{vCur}, v2, 16, v{vCur}")
    a(f"v_mov_b32 v{vOne}, 1")
    a(f"s_lshl_b32 {sT2}, {sCw}, 2")
    a(f"v_add_u32 v{vCwA}, {sT2}, {vMisc}")
    a("s_mov_b32 s26, %d" % (576 * 8192))
    a("s_mov_b32 s27, 0x20000")
    def s1_addr(vo, vml):
        a(f"s_lshl_b32 {sT2}, {sG}, 13")
        a(f"s_lshl_b32 {sT3}, {sJ}, 9")
        a(f"s_add_u32 {sT2}, {sT2}, {sT3}")
        a(f"s_add_u32 {sT2}, {sT2}, {S1O}")
        a(f"v_and_b32 v{vo}, 31, v0")
        a(f"v_lshl_add_u32 v{vo}, v{vo}, 4, {sT2}")
        a(f"v_lshrrev_b32 v{vml}, 5, v0")
        a(f"v_lshl_add_u32 v{vo}, v{vml}, 12, v{vo}")
        a(f"s_lshl_b32 {sT2}, {sG}, 7")
        a(f"s_lshl_b32 {sT3}, {sJ}, 3")
        a(f"s_add_u32 {sT2}, {sT2}, {sT3}")
        a(f"s_add_u32 {sT2}, {sT2}, {S1ML}")
        a(f"v_lshl_add_u32 v{vml}, v{vml}, 6, {sT2}")
    def s2_base(s):
        a(f"s_mul_i32 {s}, {sQ}, {9*4096}")
        a(f"s_lshl_b32 {sT3}, {sG}, 1")
        a(f"s_add_u32 {sT3}, {sT3}, {sH}")
        a(f"s_lshl_b32 {sT3}, {sT3}, 6")
        a(f"s_add_u32 {s}, {s}, {sT3}")
        a(f"s_add_u32 {s}, {s}, {S2}")
    a(f"s_cmp_eq_u32 {sCw}, 1")
    a("s_cbranch_scc1 L_clear")
    a("s_waitcnt lgkmcnt(0)")
    a("s_barrier")
    a("L_clear_back:")
    a("s_mov_b64 s[24:25], s[8:9]")
    a(f"global_load_dwordx4 v[{vX}:{vX+3}], v{T0}, {X_}")
    a(f"global_load_ushort v{vX+4}, v{T1}, {X_} offset:64")
    for n in range(8):
        a(f"buffer_load_dwordx4 v[{vKd+4*n}:{vKd+4*n+3}], v{vCur}, s[24:27], {sT0} offen nt")
        a(f"s_add_u32 {sT0}, {sT0}, {8192 if n < 7 else 25*8192}")
    a(f"buffer_load_dwordx4 v[{vKd+32}:{vKd+35}], v{vCur+1}, s[24:27], {sT0} offen nt")
    stamp(1)
    a(f"v_and_b32 v{T0}, 1, v0")
    a(f"v_lshlrev_b32 v{T0}, 4, v{T0}")
    a(f"v_mov_b32 v{T1}, 0xffff")
    a(f"v_lshlrev_b32 v{T0}, v{T0}, v{T1}")
    a(f"v_bfe_u32 v{T1}, v0, 1, 2")
    for m in range(4):
        a(f"v_cmp_eq_u32 vcc, {m}, v{T1}")
        a(f"v_cndmask_b32 v{vM+m}, 0, v{T0}, vcc")
    a(f"s_lshl_b32 {sT2}, {sCw}, 12")
    a(f"v_and_b32 v{T0}, 3, v0")
    a(f"v_lshl_add_u32 v{T0}, v{T0}, 10, {sT2}")
    a(f"v_lshrrev_b32 v{T1}, 2, v1")
    a(f"v_lshl_add_u32 v{T0}, v{T1}, 8, v{T0}")
    a(f"v_xor_b32 v{T1}, v1, v2")
    a(f"v_lshl_add_u32 v{vKa}, v{T1}, 4, v{T0}")
    for jj in range(1, 4):
        a(f"v_xor_b32 v{vKa+jj}, {jj*64}, v{vKa}")
    a(f"s_add_u32 {sT2}, {sT2}, 16384")
    a(f"v_lshl_add_u32 v{vVa}, v0, 4, {sT2}")
    a(f"s_mov_b32 {sT2}, 0x01000100")
    a(f"s_mov_b32 {sT3}, 0x03020302")
    a(f"s_mov_b32 {sScale}, {SCALE}")
    a(f"s_mov_b32 {sLg}, {LOG2E}")
    a("s_waitcnt vmcnt(9)")
    a(f"s_cmp_eq_u32 {sCw}, 1")
    a("s_cbranch_scc0 L_noarrive")
    a(f"s_lshl_b32 {sT1}, {sG}, 3")
    a(f"v_mov_b32 v{T0}, {sT1}")
    a("s_mov_b64 exec, 1")
    a(f"global_atomic_add v{T0}, v{vOne}, {DBG}")
    a("s_mov_b64 exec, -1")
    stamp(2)
    a("L_noarrive:")
    for n in range(9):
        a(f"v_perm_b32 v{T0}, v{vX + n//2}, v{vX + n//2}, {sT3 if n & 1 else sT2}")
        for m in range(4):
            a(f"v_and_b32 v{vD+4*n+m}, v{T0}, v{vM+m}")
    a(f"s_lshl_b32 {sT2}, {sCw}, 10")
    a(f"s_add_u32 {sT2}, {sT2}, {MISC + RED}")
    a(f"v_lshl_add_u32 v{T0}, v0, 4, {sT2}")
    a("s_waitcnt vmcnt(1)")
    a(f"s_cmp_eq_u32 {sCw}, 1")
    a("s_cbranch_scc1 L_wqok")
    a("s_waitcnt vmcnt(0)")
    a("L_wqok:")
    for n in range(9):
        a(f"v_mfma_f32_16x16x32_bf16 v[{vAcc}:{vAcc+3}], v[{vD+4*n}:{vD+4*n+3}], v[{vKd+4*n}:{vKd+4*n+3}], {'0' if n == 0 else f'v[{vAcc}:{vAcc+3}]'}")
    a(f"ds_write_b128 v{T0}, v[{vAcc}:{vAcc+3}]")
    flag((f"v{vCwA}", F_QRED), f"v{vOne}")
    stamp(3)
    a(f"s_cmp_eq_u32 {sCw}, 0")
    a("s_cbranch_scc1 L_qpub")
    a(f"s_cmp_eq_u32 {sCw}, 2")
    a("s_cbranch_scc1 L_qgather")
    a(f"s_cmp_eq_u32 {sCw}, 3")
    a("s_cbranch_scc1 L_gate")
    a("L_qwait:")
    a(f"v_bfe_u32 v{T0}, v0, 3, 1")
    a(f"v_lshl_add_u32 v{T0}, v{T0}, 8, {vMisc}")
    a(f"v_lshl_add_u32 v{T0}, v2, 4, v{T0}")
    a(f"v_mov_b32 v{vMax}, 0xff7fffff")
    a(f"v_mov_b32 v{vSum}, 0")
    for r in range(4):
        a(f"v_mov_b32 v{vAcc+r}, 0")
    a(f"s_mov_b32 {sLand}, 0")
    poll1(F_QRDY, sLand, 1, f"v{T1}")
    for jj in range(4):
        a(f"ds_read_b128 v[{vQ+4*jj}:{vQ+4*jj+3}], v{T0} offset:{QBF + jj*64}")
    stamp(4)
    a(f"s_mov_b32 {sLand}, 0")
    a(f"s_lshl_b32 {sNeed}, {sCw}, 2")
    a(f"s_add_u32 {sNeed}, {sNeed}, 4")
    a(f"s_mov_b32 {sRo}, 0")
    a(f"s_mov_b32 {sRh}, 1")
    a("s_waitcnt lgkmcnt(0)")

    a("L_tile:")
    for jj in range(4):
        a(f"v_add_u32 v{vCur+jj}, {sRo}, v{vKa+jj}")
    a(f"v_add_u32 v{vCur+4}, {sRo}, v{vVa}")
    poll1(F_LANDED, sLand, sNeed, f"v{T1}")
    for jj in range(4):
        a(f"ds_read_b128 v[{vKd+4*jj}:{vKd+4*jj+3}], v{vCur+jj}")
    a(f"s_add_u32 {sNeed}, {sNeed}, 16")
    for jj in range(4):
        a(f"s_waitcnt lgkmcnt({3-jj})")
        a(f"v_mfma_f32_16x16x32_bf16 v[{vS}:{vS+3}], v[{vKd+4*jj}:{vKd+4*jj+3}], v[{vQ+4*jj}:{vQ+4*jj+3}], {'0' if jj == 0 else f'v[{vS}:{vS+3}]'}")
    if emul:
        for r in range(4):
            rnd(f"v{vS+r}", f"v{vS+r}")
    for r in range(4):
        a(f"v_mul_f32 v{vS+r}, {sScale}, v{vS+r}")
    if emul:
        for r in range(4):
            rnd(f"v{vS+r}", f"v{vS+r}")
    a(f"v_max3_f32 v{T0}, v{vS}, v{vS+1}, v{vS+2}")
    a(f"v_max_f32 v{T0}, v{T0}, v{vS+3}")
    a(f"v_cmp_gt_f32 vcc, v{T0}, v{vMax}")
    a("s_cbranch_vccz L_nors")
    xrow("v_max_f32", f"v{T0}", f"v{T1}")
    a(f"v_max_f32 v{T0}, v{T0}, v{vMax}")
    a(f"v_sub_f32 v{T1}, v{vMax}, v{T0}")
    a(f"v_mul_f32 v{T1}, {sLg}, v{T1}")
    a(f"v_exp_f32 v{T1}, v{T1}")
    a(f"v_mov_b32 v{vMax}, v{T0}")
    a(f"v_mul_f32 v{vSum}, v{vSum}, v{T1}")
    for r in range(4):
        a(f"v_mul_f32 v{vAcc+r}, v{vAcc+r}, v{T1}")
    a("L_nors:")
    for r in range(4):
        a(f"v_sub_f32 v{vS+r}, v{vS+r}, v{vMax}")
    for r in range(4):
        a(f"v_mul_f32 v{vS+r}, {sLg}, v{vS+r}")
    for r in range(4):
        a(f"v_exp_f32 v{vS+r}, v{vS+r}")
    a(f"v_add_f32 v{T0}, v{vS}, v{vS+1}")
    a(f"v_add_f32 v{T1}, v{vS+2}, v{vS+3}")
    for r in range(4):
        a(f"v_cvt_pk_bf16_f32 v{vS+r}, v{vS+r}, v{vS+r}")
    a(f"v_add_f32 v{T0}, v{T0}, v{T1}")
    a(f"v_add_f32 v{vSum}, v{vSum}, v{T0}")
    for r in range(4):
        for m in range(4):
            a(f"v_and_b32 v{vB+4*r+m}, v{vS+r}, v{vM+m}")
    poll1(F_LANDED, sLand, sNeed, f"v{T1}")
    for r in range(4):
        a(f"ds_read_b128 v[{vVd+4*r}:{vVd+4*r+3}], v{vCur+4} offset:{r*1024}")
    a(f"v_mov_b32 v{T0}, {sRh}")
    flag((f"v{vCwA}", F_FREED), f"v{T0}")
    a(f"s_add_u32 {sNeed}, {sNeed}, 16")
    a(f"s_add_u32 {sRo}, {sRo}, 32768")
    a(f"s_cmp_eq_u32 {sRo}, {NR*32768}")
    a(f"s_cselect_b32 {sRo}, 0, {sRo}")
    a(f"s_add_u32 {sRh}, {sRh}, 1")
    a(f"s_cmp_lg_u32 {sRh}, 65")
    for r in range(4):
        a(f"s_waitcnt lgkmcnt({4-r})")
        a(f"v_mfma_f32_16x16x32_bf16 v[{vAcc}:{vAcc+3}], v[{vVd+4*r}:{vVd+4*r+3}], v[{vB+4*r}:{vB+4*r+3}], v[{vAcc}:{vAcc+3}]")
    a("s_cbranch_scc1 L_tile")

    xrow("v_add_f32", f"v{vSum}", f"v{T1}")
    a(f"s_lshl_b32 {sT2}, {sCw}, 10")
    a(f"s_add_u32 {sT2}, {sT2}, {MISC + RED}")
    a(f"v_and_b32 v{T0}, 7, v0")
    a(f"v_lshl_add_u32 v{T0}, v{T0}, 2, {sT2}")
    a(f"v_lshl_add_u32 v{T0}, v2, 7, v{T0}")
    a(f"v_bfe_u32 v{T1}, v0, 3, 1")
    a(f"v_lshl_add_u32 v{T0}, v{T1}, 9, v{T0}")
    a(f"s_lshl_b32 {sT2}, {sCw}, 3")
    a(f"s_add_u32 {sT2}, {sT2}, {MISC + ML}")
    a(f"v_lshl_add_u32 v{T1}, v{T1}, 5, {sT2}")
    a(f"ds_write2_b32 v{T0}, v{vAcc}, v{vAcc+1} offset0:0 offset1:8")
    a(f"ds_write2_b32 v{T0}, v{vAcc+2}, v{vAcc+3} offset0:16 offset1:24")
    a("s_mov_b64 exec, 0x101")
    a(f"ds_write_b64 v{T1}, v[{vMax}:{vMax+1}]")
    flag((f"v{vCwA}", F_DONE), f"v{vOne}")
    stamp(5)
    a(f"s_cmp_eq_u32 {sCw}, 3")
    a("s_cbranch_scc1 L_merge")

    vW, vO, vML, vA, vY = 104, 36, 52, 56, 64
    a(f"v_bfe_u32 v{T0}, v0, 2, 2")
    a(f"v_lshl_add_u32 v{T0}, v2, 3, v{T0}")
    a(f"v_mul_u32_u24 v{T0}, 288, v{T0}")
    a(f"v_and_b32 v{T1}, 3, v0")
    a(f"v_lshl_add_u32 v{T0}, v{T1}, 3, v{T0}")
    a(f"s_mul_i32 {sT2}, {sCw}, 96")
    a(f"v_add_u32 v{T0}, {sT2}, v{T0}")
    a(f"s_lshl_b32 {sT2}, {sG}, 1")
    a(f"s_add_u32 {sT2}, {sT2}, {sH}")
    a(f"s_lshl_b32 {sT1}, {sT2}, 6")
    a(f"s_add_u32 {sT1}, {sT1}, {S1ML}")
    a(f"s_lshl_b32 {sT2}, {sT2}, 12")
    a(f"s_add_u32 {sT2}, {sT2}, {S1O}")
    a(f"v_and_b32 v{T1}, 7, v0")
    a(f"v_lshl_add_u32 v{vCur+1}, v{T1}, 3, {sT1}")
    a(f"v_lshl_add_u32 v{vCur}, v{T1}, 9, {sT2}")
    a(f"v_bfe_u32 v{T1}, v0, 3, 1")
    a(f"v_lshl_add_u32 v{vCur}, v{T1}, 8, v{vCur}")
    a(f"v_lshl_add_u32 v{vCur}, v2, 5, v{vCur}")
    s2_base(sT2)
    a(f"s_mul_i32 {sT1}, {sCw}, {3*4096}")
    a(f"s_add_u32 {sT2}, {sT2}, {sT1}")
    a(f"v_lshl_add_u32 v{vCur+2}, v1, 2, {sT2}")
    a(f"v_and_b32 v{T1}, 1, v2")
    a(f"v_mul_u32_u24 v{T1}, {36*4096}, v{T1}")
    a(f"v_add_u32 v{vCur+2}, v{vCur+2}, v{T1}")
    a(f"v_add_u32 v{vCur+3}, 0x2000, v{vCur+2}")
    poll1(F_LANDED, sLand, 0x1000, f"v{T1}")
    for tt in range(3):
        for ks in range(4):
            for hf in range(2):
                r = vW + (tt * 4 + ks) * 4 + hf * 2
                a(f"ds_read_b64_tr_b16 v[{r}:{r+1}], v{T0} offset:{ks*32*288 + hf*4*288 + tt*32}")
    a("L_gpoll:")
    for k, off in enumerate((0, 16, 128, 144)):
        a(f"global_load_dwordx4 v[{vO+4*k}:{vO+4*k+3}], v{vCur}, {WS} offset:{off} sc1")
    a(f"global_load_dwordx2 v[{vML}:{vML+1}], v{vCur+1}, {WS} sc1")
    a("s_waitcnt vmcnt(0)")
    anyempty(range(vO, vO + 18), f"v{T0}")
    a("s_cbranch_vccz L_gok")
    retry("L_gpoll", False)
    a("L_gok:")
    stamp(6)
    qp = ("quad_perm:[1,0,3,2] row_mask:0xf bank_mask:0xf", "quad_perm:[2,3,0,1] row_mask:0xf bank_mask:0xf")
    a(f"v_max_f32_dpp v{T0}, v{vML}, v{vML} {qp[0]}")
    a(f"v_max_f32_dpp v{T0}, v{T0}, v{T0} {qp[1]}")
    a(f"v_sub_f32 v{T0}, v{vML}, v{T0}")
    a(f"v_mul_f32 v{T0}, {sLg}, v{T0}")
    a(f"v_exp_f32 v{T0}, v{T0}")
    a(f"v_mul_f32 v{T1}, v{T0}, v{vML+1}")
    for k in range(16):
        a(f"v_mul_f32 v{vO+k}, v{vO+k}, v{T0}")
    for p in qp:
        a(f"v_add_f32_dpp v{T1}, v{T1}, v{T1} {p}")
        if p == qp[1]:
            a(f"v_rcp_f32 v{T1}, v{T1}")
        for k in range(16):
            a(f"v_add_f32_dpp v{vO+k}, v{vO+k}, v{vO+k} {p}")
    for k in range(16):
        a(f"v_mul_f32 v{vO+k}, v{vO+k}, v{T1}")
    for k in range(8):
        a(f"v_cvt_pk_bf16_f32 v{vA+k}, v{vO+2*k}, v{vO+2*k+1}")
    a("s_waitcnt lgkmcnt(0)")
    for aa in range(2):
        for tt in range(3):
            for x in range(2):
                y = vY + (tt * 2 + x) * 4
                w = vW + (tt * 4 + aa + 2 * x) * 4
                a(f"v_mfma_f32_16x16x32_bf16 v[{y}:{y+3}], v[{vA+4*aa}:{vA+4*aa+3}], v[{w}:{w+3}], {'0' if aa == 0 else f'v[{y}:{y+3}]'}")
    for tt in range(3):
        y = vY + tt * 8
        a(f"v_permlane32_swap_b32 v{y+4}, v{y+1}")
    for tt in range(3):
        y = vY + tt * 8
        a(f"v_add_f32 v{y}, v{y}, v{y+1}")
        a(f"v_min_u32 v{y}, -2, v{y}")
    a("s_mov_b32 exec_hi, 0")
    a(f"global_store_dword v{vCur+2}, v{vY}, {WS} sc1")
    a(f"global_store_dword v{vCur+3}, v{vY+8}, {WS} offset:-4096 sc1")
    a(f"global_store_dword v{vCur+3}, v{vY+16}, {WS} sc1")
    finish()

    a("L_merge:")
    s1_addr(vCur, vCur + 1)
    a(f"v_lshl_add_u32 v{T0}, v0, 4, {vMisc}")
    a(f"v_lshrrev_b32 v{T1}, 5, v0")
    a(f"v_lshl_add_u32 v{T1}, v{T1}, 5, {vMisc}")
    a("L_mpoll:")
    a(f"ds_read_b128 v[60:63], {vMisc} offset:{F_DONE}")
    a(f"ds_read_b128 v[52:55], v{T1} offset:{ML}")
    a(f"ds_read_b128 v[56:59], v{T1} offset:{ML+16}")
    for k in range(4):
        a(f"ds_read_b128 v[{36+4*k}:{39+4*k}], v{T0} offset:{RED + k*1024}")
    a("s_waitcnt lgkmcnt(6)")
    min4(60, sT0)
    a(f"s_cmp_ge_i32 {sT0}, 1")
    a("s_cbranch_scc1 L_mok")
    a("s_waitcnt lgkmcnt(0)")
    retry("L_mpoll", False)
    a("L_mok:")
    a("s_waitcnt lgkmcnt(4)")
    a("v_max3_f32 v64, v52, v54, v56")
    a("v_max_f32 v64, v64, v58")
    for k in range(4):
        a(f"v_sub_f32 v{60+k}, v{52+2*k}, v64")
    for k in range(4):
        a(f"v_mul_f32 v{60+k}, {sLg}, v{60+k}")
    for k in range(4):
        a(f"v_exp_f32 v{60+k}, v{60+k}")
    a("v_mul_f32 v65, v60, v53")
    for k in range(1, 4):
        a(f"v_fmac_f32 v65, v{60+k}, v{53+2*k}")
    a("s_waitcnt lgkmcnt(0)")
    for r in range(4):
        a(f"v_mul_f32 v{36+r}, v60, v{36+r}")
    for k in range(1, 4):
        for r in range(4):
            a(f"v_fmac_f32 v{36+r}, v{60+k}, v{36+4*k+r}")
    for r in (36, 37, 38, 39, 64, 65):
        a(f"v_min_u32 v{r}, -2, v{r}")
    a(f"global_store_dwordx4 v{vCur}, v[36:39], {WS} sc1")
    a("s_mov_b32 exec_lo, 1")
    a("s_mov_b32 exec_hi, 1")
    a(f"global_store_dwordx2 v{vCur+1}, v[64:65], {WS} sc1")
    a("s_mov_b64 exec, -1")
    stamp(2)
    a(f"s_cmp_ge_u32 {sL}, 72")
    a("s_cbranch_scc1 L_rdone")
    a(f"v_and_b32 v{T0}, 31, v0")
    a(f"v_lshlrev_b32 v{T0}, 3, v{T0}")
    a(f"s_lshl_b32 {sT2}, {sL}, 12")
    a(f"s_add_u32 {sT2}, {sT2}, {S2}")
    a(f"v_lshl_add_u32 v{vCur+2}, v0, 2, {sT2}")
    a(f"s_lshl_b32 {sT2}, {sL}, 5")
    a(f"v_lshl_add_u32 v{vCur+3}, v1, 1, {sT2}")
    a("L_rall:")
    a(f"global_load_dword v{T1}, v{T0}, {DBG} sc1")
    a("s_waitcnt vmcnt(0)")
    a(f"v_cmp_gt_u32 vcc, 8, v{T1}")
    a("s_cbranch_vccz L_rpoll")
    retry("L_rall")
    a("L_rpoll:")
    for k in range(16):
        a(f"global_load_dword v{40+k}, v{vCur+2}, {WS} offset:{k*256} sc1")
    a("s_waitcnt vmcnt(0)")
    anyempty(range(40, 56), f"v{T0}")
    a("s_cbranch_vccz L_rok")
    retry("L_rpoll", False)
    a("L_rok:")
    stamp(6)
    for st in (1, 2, 4):
        for k in range(0, 16, 2 * st):
            a(f"v_add_f32 v{40+k}, v{40+k}, v{40+k+st}")
    a("v_permlane32_swap_b32 v40, v48")
    a("v_add_f32 v40, v40, v48")
    xrow("v_add_f32", "v40", f"v{T1}", (16,))
    rnd("v40", "v40")
    a(f"v_mul_f32 v40, v40, v{vCoef}")
    rnd("v40", "v40")
    xrow("v_add_f32", "v40", f"v{T1}", (32,))
    rnd("v40", "v40")
    a("s_mov_b64 exec, 0xffff")
    a(f"global_store_short_d16_hi v{vCur+3}, v40, {OUT} sc1")
    a("L_rdone:")
    if padto:
        a("L_padto:")
        a("s_memrealtime s[62:63]")
        a("s_waitcnt lgkmcnt(0)")
        a("s_sub_u32 s62, s62, s60")
        a(f"s_cmp_lt_u32 s62, {padto*100}")
        a("s_cbranch_scc1 L_padto")
    finish()

    a("L_clear:")
    s1_addr(vB, vB + 1)
    a(f"s_lshl_b32 {sT2}, {sL}, 10")
    a(f"v_lshl_add_u32 v{vB+2}, v0, 4, {sT2}")
    s2_base(sT2)
    a(f"v_and_b32 v{vB+3}, 3, v0")
    a(f"v_lshl_add_u32 v{vB+3}, v{vB+3}, 4, {sT2}")
    a(f"v_lshrrev_b32 v{vB+4}, 2, v0")
    a(f"v_lshl_add_u32 v{vB+3}, v{vB+4}, 12, v{vB+3}")
    a(f"v_add_u32 v{vB+4}, {36*4096}, v{vB+3}")
    for r in range(4):
        a(f"v_mov_b32 v{vB+8+r}, -1")
    a("s_waitcnt lgkmcnt(0)")
    a("s_barrier")
    a(f"global_store_dwordx4 v{vB+2}, v[{vB+8}:{vB+11}], {WS} sc1")
    a(f"global_store_dwordx4 v{vB}, v[{vB+8}:{vB+11}], {WS} sc1")
    a("s_mov_b32 exec_hi, 15")
    a(f"global_store_dwordx4 v{vB+3}, v[{vB+8}:{vB+11}], {WS} sc1")
    a(f"global_store_dwordx4 v{vB+4}, v[{vB+8}:{vB+11}], {WS} sc1")
    a("s_mov_b32 exec_lo, 1")
    a("s_mov_b32 exec_hi, 1")
    a(f"global_store_dwordx2 v{vB+1}, v[{vB+8}:{vB+9}], {WS} sc1")
    a("s_mov_b64 exec, -1")
    a("s_branch L_clear_back")

    a("L_qpub:")
    a(f"s_lshl_b32 {sT2}, {sL}, 10")
    a(f"v_lshl_add_u32 v{T1}, v0, 4, {sT2}")
    a("L_qpub_poll:")
    a(f"ds_read_b128 v[60:63], {vMisc} offset:{F_QRED}")
    for k in range(1, 4):
        a(f"ds_read_b128 v[{36+4*k}:{39+4*k}], v{T0} offset:{k*1024}")
    a("s_waitcnt lgkmcnt(0)")
    min4(60, sT0)
    a(f"s_cmp_ge_i32 {sT0}, 1")
    a("s_cbranch_scc1 L_qpub_ok")
    retry("L_qpub_poll", False)
    a("L_qpub_ok:")
    for r in range(4):
        a(f"v_add_f32 v{40+r}, v{vAcc+r}, v{40+r}")
        a(f"v_add_f32 v{44+r}, v{44+r}, v{48+r}")
    for r in range(4):
        a(f"v_add_f32 v{40+r}, v{40+r}, v{44+r}")
        a(f"v_min_u32 v{40+r}, -2, v{40+r}")
    a(f"global_store_dwordx4 v{T1}, v[40:43], {WS} sc1")
    stamp(2)
    a("s_branch L_qwait")

    a("L_qgather:")
    a(f"s_lshl_b32 {sT1}, {sG}, 3")
    a(f"v_mov_b32 v{T0}, {sT1}")
    a(f"s_lshl_b32 {sT2}, {sG}, 13")
    a(f"s_lshr_b32 {sT3}, {sJ}, 2")
    a(f"s_lshl_b32 {sT3}, {sT3}, 9")
    a(f"s_add_u32 {sT2}, {sT2}, {sT3}")
    a(f"s_add_u32 {sT2}, {sT2}, 4096")
    a(f"v_and_b32 v{T2}, 31, v0")
    a(f"v_lshl_add_u32 v{T2}, v{T2}, 4, {sT2}")
    a(f"v_lshrrev_b32 v{T3}, 5, v0")
    a(f"v_lshl_add_u32 v{T2}, v{T3}, 10, v{T2}")
    a(f"v_lshl_add_u32 v{T3}, v{T3}, 8, {vMisc}")
    a(f"v_lshl_add_u32 v{T3}, v1, 4, v{T3}")
    a(f"v_and_b32 v{T1}, 1, v2")
    a(f"v_lshl_add_u32 v{T3}, v{T1}, 3, v{T3}")
    a("L_qcnt:")
    a("s_mov_b64 exec, 1")
    a(f"global_load_dword v{T1}, v{T0}, {DBG} sc1")
    a("s_mov_b64 exec, -1")
    a("s_waitcnt vmcnt(0)")
    a(f"v_readfirstlane_b32 {sT0}, v{T1}")
    a(f"s_cmp_ge_u32 {sT0}, 8")
    a("s_cbranch_scc1 L_qg0")
    retry("L_qcnt")
    a("L_qg0:")
    stamp(2)
    a("L_qg:")
    for k in range(4):
        a(f"global_load_dwordx4 v[{36+4*k}:{39+4*k}], v{T2}, {WS} offset:{k*2048 - 4096} sc1")
    a("s_waitcnt vmcnt(0)")
    anyempty(range(36, 52), f"v{T0}")
    a("s_cbranch_vccz L_qg_ok")
    retry("L_qg", False)
    a("L_qg_ok:")
    for r in range(4):
        a(f"v_add_f32 v{36+r}, v{36+r}, v{40+r}")
        a(f"v_add_f32 v{44+r}, v{44+r}, v{48+r}")
    for r in range(4):
        a(f"v_add_f32 v{36+r}, v{36+r}, v{44+r}")
    a("v_cvt_pk_bf16_f32 v36, v36, v37")
    a("v_cvt_pk_bf16_f32 v37, v38, v39")
    a(f"ds_write_b64 v{T3}, v[36:37] offset:{QBF}")
    flag((vMisc, F_QRDY), f"v{vOne}")
    a("s_branch L_qwait")

    a("L_gate:")
    a(f"s_cmp_ge_u32 {sL}, 72")
    a("s_cbranch_scc1 L_qwait")
    a(f"s_cmp_ge_u32 {sL}, 36")
    a(f"s_cselect_b32 {sT0}, 1152, 0")
    a(f"s_add_u32 s24, s20, {sT0}")
    a("s_addc_u32 s25, s21, 0")
    a("s_mov_b32 s26, 1152")
    a("s_mov_b64 s[28:29], s[12:13]")
    a("s_mov_b32 s30, 1152")
    a("s_mov_b32 s31, 0x20000")
    a(f"v_lshlrev_b32 v{T0}, 3, v0")
    for k in range(3):
        a(f"buffer_load_dwordx2 v[{36+2*k}:{37+2*k}], v{T0}, s[24:27], 0 offen offset:{k*512}")
        a(f"buffer_load_dwordx2 v[{44+2*k}:{45+2*k}], v{T0}, s[28:31], 0 offen offset:{k*512}")
    a(f"v_mov_b32 v{T1}, 0")
    a("s_waitcnt vmcnt(0)")
    for k in range(6):
        a(f"v_lshlrev_b32 v52, 16, v{36+k}")
        a(f"v_lshlrev_b32 v53, 16, v{44+k}")
        a(f"v_and_b32 v54, 0xffff0000, v{36+k}")
        a(f"v_and_b32 v55, 0xffff0000, v{44+k}")
        a("v_mul_f32 v52, v52, v53")
        a("v_mul_f32 v54, v54, v55")
        rnd("v52", "v52")
        rnd("v54", "v54")
        a(f"v_add_f32 v{T1}, v{T1}, v52")
        a(f"v_add_f32 v{T1}, v{T1}, v54")
    for n in (1, 2, 4, 8):
        a(f"v_add_f32_dpp v{T1}, v{T1}, v{T1} row_ror:{n} row_mask:0xf bank_mask:0xf")
    xrow("v_add_f32", f"v{T1}", f"v{T0}")
    rnd(f"v{T1}", f"v{T1}")
    a(f"v_mul_f32 v{T1}, {sLg}, v{T1}")
    a(f"v_exp_f32 v{T1}, -v{T1}")
    a(f"v_add_f32 v{T1}, 1.0, v{T1}")
    a(f"v_rcp_f32 v{T1}, v{T1}")
    rnd(f"v{T1}", f"v{T1}")
    a(f"v_sub_f32 v{T0}, 1.0, v{T1}")
    rnd(f"v{T0}", f"v{T0}")
    a("v_cmp_gt_u32 vcc, 32, v0")
    a(f"v_cndmask_b32 v{vCoef}, v{T0}, v{T1}, vcc")
    a("s_branch L_qwait")
    a("L_exit:")
    a("s_endpgm")

    body, added = pad(L)
    nv = 152
    out = [HEADER.rstrip(), f"; @launch grid=(256,1,1) block=(320,1,1) lds={LDS}",
           '.amdgcn_target "amdgcn-amd-amdhsa--gfx950"', ".text", f".globl {NAME}_kernel", ".p2align 8",
           f".type {NAME}_kernel,@function"]
    out += [l if l.endswith(":") else "    " + l for l in body]
    out += ['.section .rodata,"a"', ".p2align 6", f".amdhsa_kernel {NAME}_kernel",
            f"  .amdhsa_next_free_vgpr {nv}", "  .amdhsa_next_free_sgpr 96", f"  .amdhsa_accum_offset {nv}",
            "  .amdhsa_group_segment_fixed_size 0", "  .amdhsa_kernarg_size 112", "  .amdhsa_user_sgpr_count 2",
            "  .amdhsa_user_sgpr_kernarg_segment_ptr 1", "  .amdhsa_system_sgpr_workgroup_id_x 1",
            "  .amdhsa_float_denorm_mode_32 3", ".end_amdhsa_kernel"]
    return "\n".join(out) + "\n"

if __name__ == "__main__":
    kw = eval("dict(" + (sys.argv[2] if len(sys.argv) > 2 else "") + ")")
    open(sys.argv[1], "w").write(gen(**kw))
```

```python
import sys
sys.path.insert(0, "work")
from hazard import pad

NAME = "gated_mix__gqa_block_cached__gqa_block_cached__decode"
HEADER = open("cdna_kernels/" + NAME + ".s.ref").read().split("; Override launch")[0]

BOX, IDB, PROG, GPB, EPOCH, MLB, S2, STAMP = 0, 0x80000, 0xC0000, 0xD0000, 0xFFF80, 0x104000, 0x110000, 0x200000
VEC = dict(ch0=(8,), ch1=(9,), ch2=(10,), ch3=(11,), ch4=(14, 10), d0=(12, 8), d1=(13, 9), c2=(15, 8), c3=(16, 9),
           c4=(21, 13, 9), b0=(17, 10), b1=(18, 11), b2=(19, 14, 10), b3=(20, 12, 8))
LOG2E, SCALE = 0x3FB8AA3B, 0x3DB504F3
NST, NWAVES = 16, 7

DOC = """; ---------------------------------------------------------------------------------------------
; ---------------------------------------------------------------------------------------------"""

def vec(x):
    v = 0
    for y in x.split("^"):
        for b in (VEC[y] if y in VEC else (int(y),)):
            v ^= 1 << b
    return v

def rank(vs):
    vs = list(vs); n = 0
    for b in range(31, -1, -1):
        p = next((v for v in vs if v >> b & 1), None)
        if p is None: continue
        vs.remove(p); vs = [v ^ p if v >> b & 1 else v for v in vs]; n += 1
    return n

def gen(W=20, amap="d0 d1|ch0 c2 c3 ch4|b0 b1 b2 b3 c4|ch1 ch2 ch3", dW=(-2, -1, 0, 1, 2, 4), gain=3, xm=7, xb=5, xg=-1,
        filt=3, ls=0x1300, mlr=26, qtrig=72, psleep=0, hsleep=0, pre_s=0, owarm=0, rmap=1, efl=" sc1", stamps=False, padto=0):
    L = []
    a = L.append
    NR, PRE, STG = 8, 72, 49152
    END = PRE + 2048
    Ws = [W + d for d in dW]
    g, t, rv, c = [[vec(x) for x in q.split()] for q in amap.split("|")]
    assert rank(g + t + rv + c) == 14 and max(g + t + rv + c) < 1 << 22 and min(Ws) > 16 and W <= 36
    SST = NR * 16384
    MISC = SST + 16384
    F_FREED, F_DONE, F_ML, F_LANDED, F_QRDY, F_FAC, F_TAG, F_WQ, F_W, F_CO, F_G = 0, 16, 32, 48, 52, 56, 60, 64, 68, 72, 80
    MLL, FACB, RED, QBF, OBF = 128, 192, 256, 3328, 4352
    LDS = MISC + 4864
    uid = [0]
    def lab(p):
        uid[0] += 1
        return f"L_{p}{uid[0]}"
    def note(x):
        a("; " + x)

    X_, OUT, WS = "s[4:5]", "s[26:27]", "s[30:31]"
    sL, sE, sKvh, sJ, sNear, sCw, sTmo = "s28", "s29", "s40", "s41", "s42", "s43", "s44"
    sT0, sT1, sT2, sT3, sFl, sFF = "s45", "s46", "s47", "s48", "s49", "s62"
    vMisc, vTag = "v3", 102

    def stamp(i):
        if stamps:
            a(f"s_memrealtime s[{64+2*i}:{65+2*i}]")
    def finish():
        if stamps:
            stamp(NST - 1)
            a("s_waitcnt lgkmcnt(0)")
            a(f"s_mul_i32 s45, s2, {NWAVES}")
            a("s_add_u32 s45, s45, s3")
            a("s_lshl_b32 s45, s45, 6")
            a(f"s_add_u32 s45, s45, {STAMP}")
            a("s_mov_b64 exec, 1")
            a("v_mov_b32 v1, s45")
            for i in range(NST):
                a(f"v_mov_b32 v{8+i}, s{64+2*i}")
            for i in range(NST // 4):
                a(f"global_store_dwordx4 v1, v[{8+4*i}:{11+4*i}], {WS} offset:{16*i}")
        a("s_endpgm")
    def retry(loop, sleep=0):
        if sleep:
            a(f"s_sleep {sleep}")
        a(f"s_sub_u32 {sTmo}, {sTmo}, 1")
        a(f"s_cbranch_scc0 {loop}")
        a("s_endpgm")
    def flag(addr, off, v):
        a("s_mov_b64 exec, 1")
        a(f"ds_write_b32 {addr}, {v} offset:{off}")
        a("s_mov_b64 exec, -1")
    def poll1(off, sval, need, vt, cached, sleep):
        lp, ok = lab("p"), lab("ok")
        if cached:
            a(f"s_cmp_ge_i32 {sval}, {need}")
            a(f"s_cbranch_scc1 {ok}")
        a(f"{lp}:")
        a(f"ds_read_b32 {vt}, {vMisc} offset:{off}")
        a("s_waitcnt lgkmcnt(0)")
        a(f"v_readfirstlane_b32 {sval}, {vt}")
        a(f"s_cmp_ge_i32 {sval}, {need}")
        a(f"s_cbranch_scc1 {ok}")
        retry(lp, sleep)
        a(f"{ok}:")
    def below4(r, need):
        a(f"v_min3_i32 v{r}, v{r}, v{r+1}, v{r+2}")
        a(f"v_min_i32 v{r}, v{r}, v{r+3}")
        a(f"v_cmp_gt_i32 vcc, {need}, v{r}")
    def tree(op3, op2, rs, vt):
        rs = list(rs)
        a(f"{op3} {vt}, v{rs[0]}, v{rs[1]}, v{rs[2]}")
        k = 3
        while k < len(rs):
            if k + 1 < len(rs):
                a(f"{op3} {vt}, {vt}, v{rs[k]}, v{rs[k+1]}"); k += 2
            else:
                a(f"{op2} {vt}, {vt}, v{rs[k]}"); k += 1
    def settag(rs, tag=vTag, bits=sFF):
        for r in rs:
            a(f"v_bfi_b32 v{r}, {bits}, v{tag}, v{r}")
    def untag(rs, vt, tag=vTag, bits=sFF):
        for r in rs:
            a(f"v_xor_b32 v{r}, v{tag}, v{r}")
        tree("v_or3_b32", "v_or_b32", rs, vt)
        a(f"v_and_b32 {vt}, {bits}, {vt}")
        a(f"v_cmp_ne_u32 vcc, 0, {vt}")
    def ends(base, n):
        return [base + 4 * k + r for k in range(n) for r in (0, 3)]
    def rnd(d, s):
        a(f"v_cvt_pk_bf16_f32 {d}, 0, {s}")
    def xrow(op, x, tmp, which=(32, 16)):
        for n in which:
            a(f"v_mov_b32 {tmp}, {x}")
            a(f"v_permlane{n}_swap_b32 {tmp}, {x}")
            a(f"{op} {x}, {tmp}, {x}")
    def red3(op, x):
        for p in ("quad_perm:[1,0,3,2]", "quad_perm:[2,3,0,1]", "row_half_mirror"):
            a(f"{op}_dpp {x}, {x}, {x} {p} row_mask:0xf bank_mask:0xf")
    def red4(op, x):
        for n in (1, 2, 4, 8):
            a(f"{op}_dpp {x}, {x}, {x} row_ror:{n} row_mask:0xf bank_mask:0xf")
    def sumvec(base, n, w=4):
        st = 1
        while st < n:
            for k in range(0, n, 2 * st):
                for r in range(w):
                    a(f"v_add_f32 v{base+w*k+r}, v{base+w*k+r}, v{base+w*(k+st)+r}")
            st *= 2
    def mfma(d, x, y, first):
        a(f"v_mfma_f32_16x16x32_bf16 v[{d}:{d+3}], v[{x}:{x+3}], v[{y}:{y+3}], {'0' if first else f'v[{d}:{d+3}]'}")
    def swz_key(d, gq, tmp):
        a(f"v_and_b32 {d}, 1, {gq}")
        a(f"v_mul_u32_u24 {d}, 3, {d}")
        a(f"v_lshrrev_b32 {tmp}, 1, {gq}")
        a(f"v_xor_b32 {d}, {d}, {tmp}")
    def touch(sOffs, offsets):
        a(f"s_add_u32 s98, s30, {sOffs}")
        a("s_addc_u32 s99, s31, 0")
        for o in offsets:
            a(f"s_load_dword s97, s[98:99], {o}")
    def pubstore(*pairs):
        x, y = lab("far"), lab("pub")
        a(f"s_cmp_eq_u32 {sNear}, 0")
        a(f"s_cbranch_scc1 {x}")
        for addr, data in pairs:
            a(f"global_store_dwordx4 {addr}, {data}, {WS}")
        a(f"s_branch {y}")
        a(f"{x}:")
        for addr, data in pairs:
            a(f"global_store_dwordx4 {addr}, {data}, {WS} sc1")
        a(f"{y}:")
    def orec_base(s):
        a(f"s_lshl_b32 {s}, {sKvh}, 14")
        a(f"s_and_b32 {sT3}, {sJ}, 7")
        a(f"s_lshl_b32 {sT3}, {sT3}, 11")
        a(f"s_add_u32 {s}, {s}, {sT3}")
        a(f"s_lshr_b32 {sT3}, {sJ}, 3")
        a(f"s_lshl_b32 {sT3}, {sT3}, 9")
        a(f"s_add_u32 {s}, {s}, {sT3}")

    a(f"{NAME}_kernel:")
    a("s_cmp_ge_u32 s2, 256")
    a("s_cbranch_scc1 L_exit")
    a("s_load_dwordx16 s[4:19], s[0:1], 0")
    a("s_load_dwordx8 s[20:27], s[0:1], 64")
    a("s_load_dwordx2 s[30:31], s[0:1], 104")
    if stamps:
        for i in range(NST):
            a(f"s_mov_b32 s{64+2*i}, 0")
    stamp(0)
    if padto:
        a("s_memrealtime s[60:61]")
    a("v_lshrrev_b32 v1, 6, v0")
    a("v_and_b32 v0, 63, v0")
    a("v_readfirstlane_b32 s3, v1")
    a(f"s_bfe_u32 {sJ}, s2, {3 | (4 << 16)}")
    a(f"s_lshr_b32 {sKvh}, s2, 7")
    a(f"s_lshl_b32 {sKvh}, {sKvh}, 3")
    a(f"s_and_b32 {sT0}, s2, 7")
    a(f"s_add_u32 {sKvh}, {sKvh}, {sT0}")
    a(f"s_mov_b32 {sTmo}, 0x400000")
    a("s_mov_b32 s35, 0x20000")
    a("s_mov_b32 s39, 0x20000")
    a(f"v_mov_b32 {vMisc}, {MISC}")
    a("v_and_b32 v1, 15, v0")
    a("v_lshrrev_b32 v2, 4, v0")
    a("s_cmp_eq_u32 s3, 0")
    a("s_cbranch_scc0 L_others")

    sBase, sRnd, sRing, sRho, sSo, sOff, sVar = "s50", "s51", "s52", "s53", "s54", "s55", "s56"
    vG, vR, vA0, vBase, vCnt, vF, vWo = 4, 5, 6, 8, 9, 12, 20
    a("s_setprio 3")
    a(f"s_lshr_b32 {sSo}, {sJ}, 1")
    a(f"s_mul_i32 {sSo}, {sSo}, {72*8192}")
    a(f"s_lshl_b32 {sT0}, {sKvh}, 9")
    a(f"s_add_u32 {sSo}, {sSo}, {sT0}")
    a(f"s_and_b32 {sT0}, {sJ}, 1")
    a(f"s_lshl_b32 {sT0}, {sT0}, 8")
    a(f"s_add_u32 {sSo}, {sSo}, {sT0}")
    a("v_lshlrev_b32 v7, 4, v1")
    a("v_lshl_add_u32 v7, v2, 14, v7")
    a(f"v_lshl_add_u32 v10, v0, 2, {vMisc}")
    a("v_mov_b32 v11, 0")
    a("ds_write_b32 v10, v11")
    a(f"s_mov_b32 s38, {576*8192}")
    a(f"s_mov_b32 m0, {STG}")
    a("s_waitcnt lgkmcnt(0)")
    a("s_mov_b64 s[36:37], s[10:11]")
    stamp(1)
    def kv_setup():
        note("K/V lane offsets: 16-B chunks swizzled inside a key for conflict-free LDS reads")
        swz_key("v10", "v2", "v11")
        a("v_lshlrev_b32 v10, 2, v10")
        a("v_xor_b32 v10, v10, v1")
        a(f"v_lshlrev_b32 v{vG}, 4, v10")
        for i in range(2):
            a(f"v_bfe_i32 v10, v0, {4+i}, 1")
            a(f"v_and_b32 v10, {g[i]}, v10")
            a(f"v_xor_b32 v{vG}, v{vG}, v10")
        a(f"s_lshr_b32 {sBase}, {sJ}, 3")
        a(f"s_lshl_b32 {sBase}, {sBase}, 4")
        a(f"s_add_u32 {sBase}, {sBase}, {sKvh}")
        a(f"s_lshl_b32 {sBase}, {sBase}, 22")
        for i in range(3):
            a(f"s_bitcmp1_b32 {sJ}, {i}")
            a(f"s_cselect_b32 {sT0}, {c[i]}, 0")
            a(f"s_xor_b32 {sBase}, {sBase}, {sT0}")
        a(f"v_xor_b32 v{vG}, {sBase}, v{vG}")
        a("s_mov_b64 s[32:33], s[6:7]")
        a("s_mov_b32 s34, 0x8000000")
        for k in range(9):
            a(f"v_add_u32 v10, {k*64}, v0")
            a("v_mul_u32_u24 v11, 3641, v10")
            a("v_lshrrev_b32 v11, 16, v11")
            a("v_mul_u32_u24 v11, 864, v11")
            a(f"v_lshl_add_u32 v{vWo+k}, v10, 4, v11")
        a(f"s_lshl_b32 {sOff}, {sKvh}, 1")
        a(f"s_and_b32 {sT0}, {sJ}, 1")
        a(f"s_add_u32 {sOff}, {sOff}, {sT0}")
        a(f"s_mul_i32 {sOff}, {sOff}, {128*1152}")
        a(f"s_bfe_u32 {sT0}, {sJ}, {1 | (2 << 16)}")
        a(f"s_mul_i32 {sT0}, {sT0}, 288")
        a(f"s_add_u32 {sOff}, {sOff}, {sT0}")
        for i in range(5):
            a(f"v_mov_b32 v{vF+i}, 0")
        a(f"v_mov_b32 v{vBase}, {PRE}")
        a(f"s_mov_b32 {sRnd}, 0")
        a(f"s_mov_b32 {sRing}, 0")
        a(f"s_mov_b32 {sRho}, -2")
    for N in range(PRE):
        if N:
            a("s_addk_i32 m0, 0x400")
        if N == 18:
            a("s_mov_b64 s[36:37], s[20:21]")
            a(f"s_sub_u32 {sSo}, {sSo}, {65*8192}")
        elif N == 36:
            a(f"s_cmp_ge_u32 {sJ}, 8")
            a("s_cselect_b32 s36, s22, s12")
            a("s_cselect_b32 s37, s23, s13")
            a(f"s_mov_b32 {sSo}, {sOff}")
        elif 0 < N < 36:
            a(f"s_add_u32 {sSo}, {sSo}, {8192 if N & 1 else 7*8192}")
        elif N > 36 and N % 9 == 0:
            a(f"s_add_u32 {sSo}, {sSo}, {32*1152}")
        if N == W:
            a("s_barrier")
            kv_setup()
        if N >= W:
            a(f"s_waitcnt vmcnt({W-1})")
        a(f"buffer_load_dwordx4 v{7 if N < 36 else vWo + N % 9}, s[36:39], {sSo} offen nt lds")
        if N == W: stamp(11)
        if N == W + 17: stamp(12)
        if N == W + 35: stamp(13)
        if N == PRE - 1: stamp(14)
        if N - W + 1 in (9, 18, 27, 36):
            a(f"v_mov_b32 v{vCnt}, {N - W + 1}")
            flag(vMisc, F_LANDED, f"v{vCnt}")
    a(f"s_mov_b32 {sSo}, 0")
    offs = []
    for n in range(16):
        x = (n & 3) * 16
        for i in range(4):
            if n >> i & 1: x ^= t[i]
        offs.append(x)
    def read_flags():
        a(f"ds_read_b128 v[{vF}:{vF+3}], {vMisc} offset:{F_FREED}")
        a(f"ds_read_b32 v{vF+4}, {vMisc} offset:{F_W}")
    a("L_round:")
    a(f"s_sub_i32 {sT1}, {sRho}, 4")
    a(f"s_max_i32 {sT1}, {sT1}, 1")
    a(f"s_min_i32 {sT1}, {sT1}, {sRho}")
    a("L_fr:")
    a("s_waitcnt lgkmcnt(0)")
    a(f"v_readfirstlane_b32 {sVar}, v{vF+4}")
    below4(vF, sT1)
    a("s_cbranch_vccz L_frok")
    read_flags()
    if stamps:
        a("s_add_u32 s68, s68, 1")
    retry("L_fr", psleep)
    a("L_frok:")
    a(f"v_xor_b32 v{vR}, {sSo}, v{vG}")
    a(f"s_mov_b32 m0, {sRing}")
    a(f"s_add_u32 {sRnd}, {sRnd}, 1")
    zero = list(dW).index(0)
    def body(Wv):
        note(f"round body with {Wv} loads in flight")
        for n in range(16):
            if n:
                a("s_addk_i32 m0, 0x400")
                a(f"v_xor_b32 v{vA0}, {offs[n]}, v{vR}")
            a(f"s_waitcnt vmcnt({Wv-1})")
            a(f"buffer_load_dwordx4 v{vA0 if n else vR}, s[32:35], 0 offen nt lds")
            if (n - Wv + 1) % 4 == 0:
                a(f"v_subrev_u32 v{vCnt}, {Wv - 1 - n}, v{vBase}")
                flag(vMisc, F_LANDED, f"v{vCnt}")
            if 4 <= n < 9:
                a(f"s_bitcmp1_b32 {sRnd}, {n - 4}")
                if n == 4:
                    a(f"s_cselect_b32 {sSo}, {rv[0]}, 0")
                else:
                    a(f"s_cselect_b32 {sOff}, {rv[n - 4]}, 0")
                    a(f"s_xor_b32 {sSo}, {sSo}, {sOff}")
            if n == 10:
                a(f"s_add_u32 {sRing}, {sRing}, 16384")
                a(f"s_and_b32 {sRing}, {sRing}, {NR*16384 - 1}")
                a(f"s_add_i32 {sRho}, {sRho}, 1")
            if n == 13:
                read_flags()
        a(f"v_add_u32 v{vBase}, 16, v{vBase}")
        a(f"s_and_b32 {sRnd}, {sRnd}, 31")
        a("s_cbranch_scc1 L_round")
    def dispatch(lo, hi, last):
        if hi - lo == 1:
            if stamps:
                a(f"s_add_u32 s84, s84, {Ws[lo]}")
            body(Ws[lo])
            if not last:
                a("s_branch L_phase")
            return
        mid = (lo + hi) // 2
        x = lab("var")
        a(f"s_cmp_ge_i32 {sVar}, {mid - zero}")
        a(f"s_cbranch_scc1 {x}")
        dispatch(lo, mid, False)
        a(f"{x}:")
        dispatch(mid, hi, last)
    dispatch(0, len(Ws), True)
    a("L_phase:")
    if stamps:
        a("s_mov_b32 s74, s76")
        a("s_mov_b32 s76, s78")
        a("s_mov_b32 s78, s80")
        stamp(8)
        a("s_lshl_b32 s68, s68, 6")
    a("s_mov_b64 s[32:33], s[8:9]")
    a("s_mov_b64 s[8:9], s[16:17]")
    a("s_mov_b64 s[16:17], s[18:19]")
    a(f"s_cmp_lg_i32 {sRho}, 126")
    a("s_cbranch_scc1 L_round")
    stamp(3)
    a("s_mov_b64 exec, 1")
    for k in range((max(Ws) - 1) // 4 * 4, -1, -4):
        a(f"v_mov_b32 v{vCnt}, {END - k}")
        a(f"s_waitcnt vmcnt({k})")
        a(f"ds_write_b32 {vMisc}, v{vCnt} offset:{F_LANDED}")
    stamp(4)
    finish()

    a("L_others:")
    a(f"s_lshl_b32 {sL}, {sKvh}, 4")
    a(f"s_add_u32 {sL}, {sL}, {sJ}")
    a(f"s_movk_i32 {sFF}, 0xff")
    a("s_cmp_eq_u32 s3, 1")
    a("s_cbranch_scc1 L_helper")
    a("s_barrier")
    a("s_cmp_eq_u32 s3, 6")
    a("s_cbranch_scc1 L_control")
    a("s_branch L_consumer")

    vM, vKa, vVa, vCur, vQa, vCwA, vQ, vKd, vVd, vS, vB, vAcc, vMax, vSum = 4, 8, 12, 13, 18, 19, 20, 36, 52, 68, 72, 88, 92, 93
    T0, T1, T2, T3, vSa, vFac, vRed, vRec, vW = 94, 95, 96, 97, 98, 99, 101, 103, 104
    sLand, sNeed, sRo, sRh, sScale, sLg, sBr, sEnd = "s50", "s51", "s52", "s53", "s54", "s55", "s56", "s57"
    def masks():
        note("masks that place one bf16 at k-position lane&7 of an 8-element MFMA operand")
        a(f"v_and_b32 v{T0}, 1, v0")
        a(f"v_lshlrev_b32 v{T0}, 4, v{T0}")
        a(f"v_mov_b32 v{T1}, 0xffff")
        a(f"v_lshlrev_b32 v{T0}, v{T0}, v{T1}")
        a(f"v_bfe_u32 v{T1}, v0, 1, 2")
        for m in range(4):
            a(f"v_cmp_eq_u32 vcc, {m}, v{T1}")
            a(f"v_cndmask_b32 v{vM+m}, 0, v{T0}, vcc")

    vX, vQs, vId, vTq, vG0, vG1, sRid, sRec = 20, 30, 31, 100, 98, 99, "s57", "s54"
    def q_compute(br, acc):
        for half in range(2):
            poll1(F_LANDED, sLand, br * 18 + half * 9 + 9, f"v{T1}", True, psleep)
            for n in range(9):
                a(f"ds_read_b128 v[{36+4*n}:{39+4*n}], v{vQs} offset:{(br*18 + half*9 + n)*1024}")
            for n in range(9):
                a(f"s_waitcnt lgkmcnt({8-n})")
                mfma(acc, vW + 4 * (half * 9 + n), 36 + 4 * n, half == 0 and n == 0)
    a("L_helper:")
    a(f"s_sub_u32 {sRid}, s2, 64")
    a(f"s_min_u32 {sRid}, {sRid}, s2")
    if rmap:
        a(f"s_and_b32 {sT0}, {sRid}, 7")
        a(f"s_lshl_b32 {sT0}, {sT0}, 2")
        a(f"s_bfe_u32 {sT1}, {sRid}, {3 | (2 << 16)}")
        a(f"s_add_u32 {sT0}, {sT0}, {sT1}")
        a(f"s_andn2_b32 {sRid}, {sRid}, 31")
        a(f"s_add_u32 {sRid}, {sRid}, {sT0}")
    a(f"s_cmp_ge_u32 {sJ}, 8")
    a(f"s_cselect_b32 {sRid}, 0xff, {sRid}")
    a(f"s_lshr_b32 {sT1}, {sJ}, 1")
    a(f"s_mul_i32 {sT1}, {sT1}, 144")
    a(f"v_bfe_u32 v{T0}, v0, 3, 1")
    a(f"v_mul_u32_u24 v{T0}, 1152, v{T0}")
    a(f"v_add_u32 v{T0}, {sT1}, v{T0}")
    a(f"v_lshl_add_u32 v{T0}, v2, 2, v{T0}")
    a(f"v_mov_b32 v{T2}, {EPOCH}")
    a("s_waitcnt lgkmcnt(0)")
    a("s_mov_b64 exec, 1")
    a(f"global_load_dword v{vX+9}, v{T2}, {WS} sc1")
    a("s_mov_b64 exec, -1")
    for k in range(9):
        a(f"global_load_dword v{vX+k}, v{T0}, {X_} offset:{16*k}")
    a("s_barrier")
    stamp(1)
    a(f"s_cmp_ge_u32 {sRid}, 72")
    a("s_cbranch_scc1 L_nogl")
    a(f"s_cmp_ge_u32 {sRid}, 36")
    a(f"s_cselect_b32 {sT0}, 1152, 0")
    a(f"s_add_u32 s32, s4, {sT0}")
    a("s_addc_u32 s33, s5, 0")
    a("s_mov_b32 s34, 1152")
    a("s_mov_b64 s[36:37], s[24:25]")
    a("s_mov_b32 s38, 1152")
    a(f"v_lshlrev_b32 v{T0}, 3, v0")
    for k in range(3):
        a(f"buffer_load_dwordx2 v[{76+2*k}:{77+2*k}], v{T0}, s[32:35], 0 offen offset:{k*512}")
        a(f"buffer_load_dwordx2 v[{82+2*k}:{83+2*k}], v{T0}, s[36:39], 0 offen offset:{k*512}")
    a("L_nogl:")
    masks()
    a(f"v_lshlrev_b32 v{vQs}, 4, v0")
    a(f"v_add_u32 v{vQs}, {STG}, v{vQs}")
    a(f"s_mov_b32 {sLg}, {LOG2E}")
    a(f"s_mov_b32 {sLand}, 0")
    a(f"s_mov_b32 {sT2}, 0x01000100")
    a(f"s_mov_b32 {sT3}, 0x03020302")
    a(f"s_mov_b32 {sNear}, 1")
    a(f"s_mul_i32 {sT1}, {sKvh}, {ls}")
    a(f"s_add_u32 {sT1}, {sT1}, {IDB}")
    a(f"v_lshl_add_u32 v{vId}, v1, 3, {sT1}")
    a(f"s_getreg_b32 {sT1}, hwreg(20, 0, 4)")
    a("s_waitcnt vmcnt(0)")
    a(f"v_readfirstlane_b32 {sE}, v{vX+9}")
    a(f"s_add_u32 {sT0}, {sE}, 1")
    a(f"s_and_b32 {sT0}, {sT0}, 15")
    a(f"v_mov_b32 v{vTq}, {sT0}")
    a(f"s_add_u32 {sE}, {sE}, 2")
    a(f"s_and_b32 {sT0}, {sE}, {sFF}")
    a(f"v_mov_b32 v{vTag}, {sT0}")
    a(f"v_mov_b32 v{vId+1}, {sE}")
    a(f"v_mov_b32 v{vId+2}, {sT1}")
    a(f"s_lshl_b64 exec, 1, {sJ}")
    a(f"global_store_dwordx2 v{vId}, v[{vId+1}:{vId+2}], {WS} sc1")
    flag(vMisc, F_TAG, f"v{vTag}")
    for n in range(18):
        a(f"v_perm_b32 v{T0}, v{vX + n//2}, v{vX + n//2}, {sT3 if n & 1 else sT2}")
        for m in range(4):
            a(f"v_and_b32 v{vW+4*n+m}, v{T0}, v{vM+m}")
    q_compute(0, vAcc)
    q_compute(1, vB)
    a(f"v_mov_b32 v{T1}, 1")
    flag(vMisc, F_WQ, f"v{T1}")
    stamp(2)
    a("s_waitcnt vmcnt(0)")
    a("L_idpoll:")
    a(f"global_load_dwordx2 v[{T0}:{T1}], v{vId}, {WS} sc1")
    a("s_waitcnt vmcnt(0)")
    a(f"v_cmp_ne_u32 vcc, {sE}, v{T0}")
    a("s_cbranch_vccz L_idok")
    retry("L_idpoll", hsleep)
    a("L_idok:")
    a(f"v_cmp_ne_u32 vcc, v{vId+2}, v{T1}")
    a("s_cbranch_vccz L_near")
    a(f"s_mov_b32 {sNear}, 0")
    a("L_near:")
    a(f"s_lshl_b32 {sT2}, {sL}, 10")
    a(f"v_lshl_add_u32 v{T1}, v0, 4, {sT2}")
    a(f"v_add_u32 v{T2}, 0x40000, v{T1}")
    settag([*range(vAcc, vAcc + 4), *range(vB, vB + 4)], vTq, 15)
    pubstore((f"v{T1}", f"v[{vAcc}:{vAcc+3}]"), (f"v{T2}", f"v[{vB}:{vB+3}]"))
    a(f"v_mov_b32 v{T0}, {sNear}")
    flag(vMisc, F_CO, f"v{T0}")
    stamp(3)
    a(f"s_lshl_b32 {sT2}, {sKvh}, 14")
    a(f"s_lshr_b32 {sT3}, {sJ}, 3")
    a(f"s_lshl_b32 {sT3}, {sT3}, 9")
    a(f"s_add_u32 {sT2}, {sT2}, {sT3}")
    a(f"s_add_u32 {sT2}, {sT2}, {BOX + 4096}")
    a(f"v_and_b32 v{T2}, 31, v0")
    a(f"v_lshl_add_u32 v{T2}, v{T2}, 4, {sT2}")
    a(f"v_lshrrev_b32 v{T3}, 5, v0")
    a(f"v_lshl_add_u32 v{T2}, v{T3}, 10, v{T2}")
    a(f"v_lshl_add_u32 v{T3}, v{T3}, 8, {vMisc}")
    a(f"v_lshl_add_u32 v{T3}, v1, 4, v{T3}")
    a(f"v_and_b32 v{T1}, 1, v2")
    a(f"v_lshl_add_u32 v{T3}, v{T1}, 3, v{T3}")
    a(f"s_mov_b32 {sBr}, 1")
    a("s_waitcnt vmcnt(0)")
    poll1(F_LANDED, sLand, qtrig, f"v{T1}", True, psleep)
    stamp(4)
    a("L_qg:")
    if stamps:
        a("s_add_u32 s82, s82, 1")
    a(f"v_add_u32 v{vCur}, 0x2000, v{T2}")
    for k in range(8):
        a(f"global_load_dwordx4 v[{36+4*k}:{39+4*k}], v{T2 if k < 4 else vCur}, {WS} offset:{(k & 3)*2048 - 4096} sc1")
    a("s_waitcnt vmcnt(0)")
    untag(range(36, 68), f"v{T1}", vTq, 15)
    a("s_cbranch_vccz L_qgok")
    retry("L_qg", hsleep)
    a("L_qgok:")
    sumvec(36, 8)
    a("v_cvt_pk_bf16_f32 v36, v36, v37")
    a("v_cvt_pk_bf16_f32 v37, v38, v39")
    a(f"v_mov_b32 v{T1}, {sBr}")
    a(f"ds_write_b64 v{T3}, v[36:37] offset:{QBF}")
    flag(vMisc, F_QRDY, f"v{T1}")
    a(f"v_add_u32 v{T2}, 0x40000, v{T2}")
    a(f"v_add_u32 v{T3}, 0x200, v{T3}")
    a(f"s_add_u32 {sBr}, {sBr}, 1")
    a(f"s_cmp_eq_u32 {sBr}, 2")
    a("s_cbranch_scc1 L_qg")
    stamp(5)

    a(f"s_lshr_b32 {sT2}, {sL}, 3")
    a(f"s_lshl_b32 {sT2}, {sT2}, 8")
    a(f"s_add_u32 {sT2}, {sT2}, {MLB}")
    a(f"v_lshl_add_u32 v{vCur+2}, v1, 4, {sT2}")
    a(f"s_and_b32 {sT3}, {sL}, 7")
    a(f"s_lshl_b32 {sT3}, {sT3}, 4")
    a(f"s_add_u32 {sT2}, {sT2}, {sT3}")
    a(f"v_lshrrev_b32 v{T0}, 5, v0")
    a(f"v_lshl_add_u32 v{vCur+1}, v{T0}, 7, {sT2}")
    a(f"v_lshl_add_u32 v{vKa}, v{T0}, 5, {vMisc}")
    a(f"v_and_b32 v{T0}, 8, v0")
    a(f"v_add_u32 v{vKa+1}, v{T0}, {vMisc}")
    orec_base(sRec)
    a(f"s_mov_b32 {sBr}, 1")
    a(f"s_movk_i32 {sNeed}, {PRE + 768}")
    a("L_hnext:")
    a(f"s_cmp_eq_u32 {sNear}, 0")
    a("s_cbranch_scc1 L_hbranch")
    a(f"v_readfirstlane_b32 {sT0}, v{vCur+1}")
    touch(sT0, [0, 128])
    a("L_hbranch:")
    a(f"ds_read_b128 v[60:63], {vMisc} offset:{F_ML}")
    a(f"ds_read_b128 v[52:55], v{vKa} offset:{MLL}")
    a(f"ds_read_b128 v[56:59], v{vKa} offset:{MLL+16}")
    a("s_waitcnt lgkmcnt(0)")
    below4(60, sBr)
    a("s_cbranch_vccz L_mlpub")
    retry("L_hbranch", hsleep)
    a("L_mlpub:")
    a("v_max3_f32 v64, v52, v54, v56")
    a("v_max_f32 v64, v64, v58")
    for k in range(4):
        a(f"v_sub_f32 v{60+k}, v{52+2*k}, v64")
    for k in range(4):
        a(f"v_mul_f32 v{60+k}, {sLg}, v{60+k}")
    for k in range(4):
        a(f"v_exp_f32 v{60+k}, v{60+k}")
    a(f"v_mov_b32 v66, {sE}")
    a(f"v_mov_b32 v67, {sE}")
    a("v_mul_f32 v65, v60, v53")
    for k in range(1, 4):
        a(f"v_fmac_f32 v65, v{60+k}, v{53+2*k}")
    a("s_mov_b32 exec_lo, 1")
    a("s_mov_b32 exec_hi, 1")
    pubstore((f"v{vCur+1}", "v[64:67]"))
    a("s_mov_b64 exec, -1")
    poll1(F_LANDED, sLand, sNeed, f"v{T1}", True, hsleep)
    a("L_mlpoll:")
    a(f"global_load_dwordx4 v[36:39], v{vCur+2}, {WS} sc1")
    a("s_waitcnt vmcnt(0)")
    a(f"v_xor_b32 v38, {sE}, v38")
    a(f"v_xor_b32 v39, {sE}, v39")
    a("v_or_b32 v38, v38, v39")
    a("v_cmp_ne_u32 vcc, 0, v38")
    a("s_cbranch_vccz L_mlok")
    retry("L_mlpoll", hsleep)
    a("L_mlok:")
    a("v_mov_b32 v40, v36")
    red3("v_max_f32", "v40")
    a("v_sub_f32 v36, v36, v40")
    a(f"v_mul_f32 v36, {sLg}, v36")
    a("v_exp_f32 v36, v36")
    a(f"v_mov_b32 v{T1}, {sBr}")
    a("v_mul_f32 v41, v36, v37")
    red3("v_add_f32", "v41")
    a("v_rcp_f32 v41, v41")
    a("s_mov_b64 exec, 0x101")
    a(f"ds_write_b64 v{vKa+1}, v[40:41] offset:{FACB}")
    flag(vMisc, F_FAC, f"v{T1}")
    if pre_s:
        a(f"s_cmp_eq_u32 {sNear}, 0")
        a("s_cbranch_scc1 L_notouch")
        touch(sRec, [h * 1024 + k * 64 for h in range(2) for k in range(8)])
        a("L_notouch:")
    a(f"v_add_u32 v{vCur+1}, 0x2000, v{vCur+1}")
    a(f"v_add_u32 v{vCur+2}, 0x2000, v{vCur+2}")
    a(f"s_add_u32 {sRec}, {sRec}, 0x40000")
    a(f"s_add_u32 {sNeed}, {sNeed}, 1024")
    a(f"s_add_u32 {sBr}, {sBr}, 1")
    a(f"s_cmp_eq_u32 {sBr}, 2")
    a("s_cbranch_scc1 L_hnext")

    a(f"s_cmp_ge_u32 {sRid}, 72")
    a("s_cbranch_scc1 L_rdone")
    a(f"v_mov_b32 v{T1}, 0")
    for k in range(6):
        a(f"v_lshlrev_b32 v52, 16, v{76+k}")
        a(f"v_lshlrev_b32 v53, 16, v{82+k}")
        a(f"v_and_b32 v54, 0xffff0000, v{76+k}")
        a(f"v_and_b32 v55, 0xffff0000, v{82+k}")
        a("v_mul_f32 v52, v52, v53")
        a("v_mul_f32 v54, v54, v55")
        rnd("v52", "v52")
        rnd("v54", "v54")
        a(f"v_add_f32 v{T1}, v{T1}, v52")
        a(f"v_add_f32 v{T1}, v{T1}, v54")
    red4("v_add_f32", f"v{T1}")
    xrow("v_add_f32", f"v{T1}", f"v{T0}")
    rnd(f"v{T1}", f"v{T1}")
    a(f"v_mul_f32 v{T1}, {sLg}, v{T1}")
    a(f"v_exp_f32 v{T1}, -v{T1}")
    a(f"v_add_f32 v{T1}, 1.0, v{T1}")
    a(f"v_rcp_f32 v{T1}, v{T1}")
    rnd(f"v{vG0}", f"v{T1}")
    a(f"v_sub_f32 v{T0}, 1.0, v{vG0}")
    rnd(f"v{vG1}", f"v{T0}")
    a(f"s_lshl_b32 {sT2}, {sRid}, 12")
    a(f"s_add_u32 {sT2}, {sT2}, {S2}")
    a(f"v_lshl_add_u32 v34, v0, 2, {sT2}")
    a(f"s_lshl_b32 {sT2}, {sRid}, 5")
    a(f"v_lshl_add_u32 v35, v1, 1, {sT2}")
    a("v_mov_b32 v48, 0")
    a("L_rpoll:")
    for k in range(8):
        a(f"global_load_dword v{40+k}, v34, {WS} offset:{k*256} sc1")
    a("s_waitcnt vmcnt(0)")
    untag(range(40, 48), f"v{T0}")
    a("s_cbranch_vccz L_rok")
    retry("L_rpoll")
    a("L_rok:")
    stamp(6)
    for k in (0, 2, 4, 6):
        a(f"v_add_f32 v{40+k}, v{40+k}, v{41+k}")
    a("v_add_f32 v40, v40, v42")
    a("v_add_f32 v44, v44, v46")
    a(f"s_cmp_eq_u32 {sBr}, 3")
    a("v_add_f32 v40, v40, v44")
    xrow("v_add_f32", "v40", f"v{T1}", (32, 16))
    rnd("v40", "v40")
    a(f"v_mul_f32 v40, v40, v{vG0}")
    rnd("v40", "v40")
    a("v_add_f32 v48, v48, v40")
    a("s_cbranch_scc1 L_rnext")
    rnd("v48", "v48")
    a("s_mov_b64 exec, 0xffff")
    a(f"global_store_short_d16_hi v35, v48, {OUT}")
    a("L_rdone:")
    if padto:
        a("L_padto:")
        a("s_memrealtime s[96:97]")
        a("s_waitcnt lgkmcnt(0)")
        a("s_sub_u32 s96, s96, s60")
        a(f"s_cmp_lt_u32 s96, {padto*100}")
        a("s_cbranch_scc1 L_padto")
    finish()
    a("L_rnext:")
    stamp(8)
    a(f"s_mov_b32 {sBr}, 4")
    a("v_add_u32 v34, 0x800, v34")
    a(f"v_mov_b32 v{vG0}, v{vG1}")
    a("s_cmp_eq_u32 s2, 0")
    a("s_cbranch_scc0 L_rwait")
    a(f"v_mov_b32 v{T0}, {EPOCH}")
    a(f"v_mov_b32 v{T2}, {sE}")
    a("s_mov_b64 exec, 1")
    a(f"global_store_dword v{T0}, v{T2}, {WS}{efl}")
    a("s_mov_b64 exec, -1")
    a("L_rwait:")
    poll1(F_DONE + 12, sFl, 2, f"v{T1}", False, hsleep)
    if owarm:
        a(f"global_load_ushort v{T1}, v35, {OUT}")
    a("s_branch L_rpoll")

    vO, vA, vY, vGa, sPass = 36, 72, 160, 152, "s63"
    sE0 = "s[58:59]"
    a("L_consumer:")
    a(f"s_sub_u32 {sCw}, s3, 2")
    stamp(1)
    a(f"s_lshl_b32 {sT2}, {sCw}, 2")
    a(f"v_add_u32 v{vCwA}, {sT2}, {vMisc}")
    masks()
    a(f"s_lshl_b32 {sT2}, {sCw}, 12")
    a(f"v_and_b32 v{T0}, 3, v0")
    a(f"v_lshl_add_u32 v{T0}, v{T0}, 10, {sT2}")
    a(f"v_lshrrev_b32 v{T1}, 2, v1")
    a(f"v_lshl_add_u32 v{T0}, v{T1}, 8, v{T0}")
    swz_key(f"v{T2}", f"v{T1}", f"v{T3}")
    a(f"v_and_b32 v{T1}, 3, v0")
    a(f"v_lshl_add_u32 v{T1}, v{T2}, 2, v{T1}")
    a(f"v_xor_b32 v{T1}, v{T1}, v2")
    a(f"v_lshl_add_u32 v{vKa}, v{T1}, 4, v{T0}")
    for jj in range(1, 4):
        a(f"v_xor_b32 v{vKa+jj}, {jj*64}, v{vKa}")
    swz_key(f"v{T2}", "v2", f"v{T3}")
    a(f"v_lshlrev_b32 v{T2}, 2, v{T2}")
    a(f"v_xor_b32 v{T2}, v{T2}, v0")
    a(f"v_lshl_add_u32 v{vVa}, v{T2}, 4, {sT2}")
    a(f"s_add_u32 {sT2}, {sT2}, {SST}")
    a(f"v_lshrrev_b32 v{T0}, 3, v0")
    a(f"v_lshl_add_u32 v{vSa}, v{T0}, 4, {sT2}")
    a(f"s_cmp_eq_u32 {sCw}, 3")
    a(f"s_cselect_b32 {sT2}, 0, {sCw}")
    a(f"s_lshl_b32 {sT2}, {sT2}, 10")
    a(f"s_add_u32 {sT2}, {sT2}, {MISC + RED}")
    a(f"v_lshl_add_u32 v{vRed}, v0, 4, {sT2}")
    a(f"v_bfe_u32 v{T1}, v0, 3, 1")
    a(f"v_lshl_add_u32 v{vQa}, v{T1}, 8, {vMisc}")
    a(f"v_lshl_add_u32 v{vQa}, v2, 4, v{vQa}")
    orec_base(sT2)
    a(f"v_and_b32 v{T0}, 7, v0")
    a(f"v_lshl_add_u32 v{vRec}, v{T0}, 4, {sT2}")
    a(f"v_lshl_add_u32 v{vRec}, v2, 7, v{vRec}")
    a(f"v_lshl_add_u32 v{vRec}, v{T1}, 10, v{vRec}")
    a(f"s_lshl_b32 {sT2}, {sKvh}, 14")
    a(f"s_and_b32 {sT1}, {sJ}, 1")
    a(f"s_lshl_b32 {sT3}, {sT1}, 10")
    a(f"s_add_u32 {sT2}, {sT2}, {sT3}")
    a(f"s_lshl_b32 {sT3}, {sCw}, 7")
    a(f"s_add_u32 {sT2}, {sT2}, {sT3}")
    a(f"v_lshl_add_u32 v{vGa}, v{T0}, 4, {sT2}")
    a(f"v_lshrrev_b32 v{T2}, 3, v0")
    a(f"v_lshl_add_u32 v{vGa}, v{T2}, 11, v{vGa}")
    a(f"s_lshl_b32 {sT2}, {sCw}, 6")
    a(f"s_add_u32 {sT2}, {sT2}, {MISC + OBF}")
    a(f"v_lshl_add_u32 v{vGa+1}, v{T0}, 3, {sT2}")
    a(f"v_and_b32 v{T0}, 1, v2")
    a(f"v_lshl_add_u32 v{vGa+1}, v{T0}, 2, v{vGa+1}")
    a(f"v_lshrrev_b32 v{T1}, 5, v0")
    a(f"v_lshl_add_u32 v{vGa+1}, v{T1}, 8, v{vGa+1}")
    a(f"v_bfe_u32 v{T1}, v0, 2, 1")
    a(f"v_lshl_add_u32 v{vGa+4}, v{T1}, 8, {vMisc}")
    a(f"v_lshl_add_u32 v{vGa+4}, v2, 4, v{vGa+4}")
    a(f"s_lshr_b32 {sT0}, {sJ}, 3")
    a(f"s_lshl_b32 {sT0}, {sT0}, 4")
    a(f"s_add_u32 {sT0}, {sT0}, {sKvh}")
    a(f"s_lshl_b32 {sT0}, {sT0}, 1")
    a(f"s_add_u32 {sT0}, {sT0}, {sT1}")
    a(f"s_lshl_b32 {sT0}, {sT0}, 6")
    a(f"s_bfe_u32 {sT1}, {sJ}, {1 | (2 << 16)}")
    a(f"s_mul_i32 {sT1}, {sT1}, 3")
    a(f"s_add_u32 {sT1}, {sT1}, {sCw}")
    a(f"s_mul_i32 {sT1}, {sT1}, {3*4096}")
    a(f"s_add_u32 {sT1}, {sT1}, {sT0}")
    a(f"s_add_u32 {sT1}, {sT1}, {S2}")
    a(f"v_lshl_add_u32 v{vGa+2}, v1, 2, {sT1}")
    a(f"v_mul_u32_u24 v{T0}, {36*4096}, v{T0}")
    a(f"v_add_u32 v{vGa+2}, v{vGa+2}, v{T0}")
    a(f"v_add_u32 v{vGa+3}, 0x2000, v{vGa+2}")
    a(f"v_bfe_u32 v{T2}, v0, 2, 2")
    a(f"v_lshl_add_u32 v{T2}, v{T2}, 2, v2")
    a(f"v_mul_u32_u24 v{T2}, 576, v{T2}")
    a(f"v_and_b32 v{T1}, 3, v0")
    a(f"v_lshl_add_u32 v{T2}, v{T1}, 3, v{T2}")
    a(f"s_mul_i32 {sT2}, {sCw}, 96")
    a(f"s_add_u32 {sT2}, {sT2}, {STG + 36*1024}")
    a(f"v_add_u32 v{T2}, {sT2}, v{T2}")
    a(f"s_mov_b32 {sScale}, {SCALE}")
    a(f"s_mov_b32 {sLg}, {LOG2E}")
    a("s_mov_b32 s58, 0x01010101")
    a("s_mov_b32 s59, 0x01010101")
    a(f"s_mov_b32 {sLand}, 0")
    a(f"s_lshl_b32 {sNeed}, {sCw}, 2")
    a(f"s_add_u32 {sNeed}, {sNeed}, {PRE + 4}")
    a(f"s_mov_b32 {sRo}, 0")
    a(f"s_mov_b32 {sRh}, 2")
    a(f"s_mov_b32 {sBr}, 1")
    a(f"s_mov_b32 {sPass}, 1")
    a(f"s_cmp_eq_u32 {sCw}, 3")
    a("s_cbranch_scc1 L_wqwait")
    poll1(F_LANDED, sLand, PRE, f"v{T1}", False, psleep)
    for ks in range(4):
        for tt in range(3):
            for hf in range(2):
                r = vW + (tt * 4 + ks) * 4 + hf * 2
                a(f"ds_read_b64_tr_b16 v[{r}:{r+1}], v{T2} offset:{ks*32*288 + hf*288 + tt*32}")
    a("s_branch L_stgfree")
    a("L_wqwait:")
    a("s_waitcnt lgkmcnt(0)")
    a(f"s_lshl_b32 {sT0}, {sL}, 10")
    touch(sT0, [b * 0x40000 + k * 64 for b in range(2) for k in range(16)])
    poll1(F_WQ, sFl, 1, f"v{T1}", False, psleep)
    a("L_stgfree:")
    a(f"v_mov_b32 v{T0}, 1")
    flag(f"v{vCwA}", F_FREED, f"v{T0}")

    a("L_branch:")
    poll1(F_QRDY, sFl, sBr, f"v{T1}", False, psleep)
    a(f"ds_read_b32 v{vTag}, {vMisc} offset:{F_TAG}")
    a(f"ds_read_b32 v{T2}, {vMisc} offset:{F_CO}")
    for jj in range(4):
        a(f"ds_read_b128 v[{vQ+4*jj}:{vQ+4*jj+3}], v{vQa} offset:{QBF + jj*64}")
    if stamps:
        a(f"s_cmp_eq_u32 {sBr}, 1")
        a("s_cbranch_scc0 L_st4")
        stamp(4)
        a("L_st4:")
    a(f"v_add_u32 v{vQa}, 0x200, v{vQa}")
    a(f"v_mov_b32 v{vCur+4}, v{vSa}")
    a(f"s_add_u32 {sEnd}, {sRh}, 32")
    a("s_waitcnt lgkmcnt(0)")
    a(f"v_readfirstlane_b32 {sNear}, v{T2}")
    def advance():
        a(f"v_mov_b32 v{T0}, {sRh}")
        flag(f"v{vCwA}", F_FREED, f"v{T0}")
        a(f"s_add_u32 {sNeed}, {sNeed}, 16")
        a(f"s_add_u32 {sRo}, {sRo}, 16384")
        a(f"s_and_b32 {sRo}, {sRo}, {NR*16384 - 1}")
        a(f"s_add_u32 {sRh}, {sRh}, 1")
        a(f"s_cmp_lg_u32 {sRh}, {sEnd}")

    a("L_ktile:")
    for jj in range(4):
        a(f"v_add_u32 v{vCur+jj}, {sRo}, v{vKa+jj}")
    poll1(F_LANDED, sLand, sNeed, f"v{T1}", True, psleep)
    for jj in range(4):
        a(f"ds_read_b128 v[{vKd+4*jj}:{vKd+4*jj+3}], v{vCur+jj}")
    advance()
    for jj in range(4):
        a(f"s_waitcnt lgkmcnt({4-jj})")
        mfma(vS, vKd + 4 * jj, vQ + 4 * jj, jj == 0)
    a(f"s_mov_b64 exec, {sE0}")
    a(f"ds_write_b128 v{vCur+4}, v[{vS}:{vS+3}]")
    a("s_mov_b64 exec, -1")
    a(f"v_add_u32 v{vCur+4}, 0x80, v{vCur+4}")
    a("s_cbranch_scc1 L_ktile")
    a(f"s_cmp_eq_u32 {sBr}, 2")
    a("s_cbranch_scc1 L_gpoll")

    a("L_mid:")
    a(f"v_and_b32 v{T0}, 0x36, v0")
    a(f"v_and_b32 v{T1}, 1, v0")
    a(f"v_lshl_add_u32 v{T0}, v{T1}, 3, v{T0}")
    a(f"v_bfe_u32 v{T3}, v0, 3, 1")
    a(f"v_add_u32 v{T0}, v{T3}, v{T0}")
    a(f"s_lshl_b32 {sT2}, {sCw}, 12")
    a(f"s_add_u32 {sT2}, {sT2}, {SST}")
    a(f"v_lshl_add_u32 v{T2}, v{T0}, 4, {sT2}")
    for k in range(4):
        a(f"ds_read_b128 v[{vKd+4*k}:{vKd+4*k+3}], v{T2} offset:{k*1024}")
    a(f"s_lshl_b32 {sT2}, {sCw}, 3")
    a(f"s_add_u32 {sT2}, {sT2}, {MISC + MLL}")
    a(f"v_lshl_add_u32 v{T3}, v{T3}, 5, {sT2}")
    for r in range(4):
        a(f"v_mov_b32 v{vAcc+r}, 0")
    a("s_waitcnt lgkmcnt(0)")
    R16 = range(vKd, vKd + 16)
    for r in R16:
        rnd(f"v{r}", f"v{r}")
    for r in R16:
        a(f"v_mul_f32 v{r}, {sScale}, v{r}")
    for r in R16:
        rnd(f"v{r}", f"v{r}")
    tree("v_max3_f32", "v_max_f32", R16, f"v{vMax}")
    a(f"v_max_f32 v{vMax}, 0xff7fffff, v{vMax}")
    red3("v_max_f32", f"v{vMax}")
    xrow("v_max_f32", f"v{vMax}", f"v{T0}")
    for r in R16:
        a(f"v_sub_f32 v{r}, v{r}, v{vMax}")
    for r in R16:
        a(f"v_mul_f32 v{r}, {sLg}, v{r}")
    for r in R16:
        a(f"v_exp_f32 v{r}, v{r}")
    for k in range(16):
        a(f"v_cvt_pk_bf16_f32 v{vB+k}, v{vKd+k}, v{vKd+k}")
    for k in range(4):
        a(f"ds_write_b128 v{T2}, v[{vB+4*k}:{vB+4*k+3}] offset:{k*1024}")
    sumvec(vKd, 16, 1)
    red3("v_add_f32", f"v{vKd}")
    xrow("v_add_f32", f"v{vKd}", f"v{T0}")
    a(f"v_mov_b32 v{vSum}, v{vKd}")
    a(f"v_mov_b32 v{T0}, {sBr}")
    a("s_mov_b64 exec, 0x101")
    a(f"ds_write_b64 v{T3}, v[{vMax}:{vMax+1}]")
    flag(f"v{vCwA}", F_ML, f"v{T0}")
    a(f"v_mov_b32 v{vCur+4}, v{vSa}")
    a(f"s_add_u32 {sEnd}, {sRh}, {mlr}")

    a("L_vtile:")
    a(f"ds_read_b128 v[{vS}:{vS+3}], v{vCur+4}")
    a(f"v_add_u32 v{vCur}, {sRo}, v{vVa}")
    for r in range(1, 4):
        a(f"v_xor_b32 v{vCur+r}, {r*16}, v{vCur}")
    a(f"v_add_u32 v{vCur+4}, 0x80, v{vCur+4}")
    a("s_waitcnt lgkmcnt(0)")
    for r in range(4):
        for m in range(4):
            a(f"v_and_b32 v{vB+4*r+m}, v{vS+r}, v{vM+m}")
    poll1(F_LANDED, sLand, sNeed, f"v{T1}", True, psleep)
    for r in range(4):
        a(f"ds_read_b128 v[{vVd+4*r}:{vVd+4*r+3}], v{vCur+r} offset:{r*1024}")
    advance()
    for r in range(4):
        a(f"s_waitcnt lgkmcnt({4-r})")
        mfma(vAcc, vVd + 4 * r, vB + 4 * r, False)
    a("s_cbranch_scc1 L_vtile")
    a(f"s_and_b32 {sT0}, {sRh}, 31")
    a(f"s_cmp_eq_u32 {sT0}, 2")
    a("s_cbranch_scc0 L_factor")

    a(f"v_mov_b32 v{T0}, {sBr}")
    a(f"s_cmp_eq_u32 {sCw}, 3")
    a("s_cbranch_scc0 L_part")
    a("L_mpoll:")
    a(f"ds_read_b96 v[48:50], {vMisc} offset:{F_DONE}")
    for k in range(3):
        a(f"ds_read_b128 v[{36+4*k}:{39+4*k}], v{vRed} offset:{k*1024}")
    a("s_waitcnt lgkmcnt(3)")
    a("v_min3_u32 v48, v48, v49, v50")
    a(f"v_cmp_gt_u32 vcc, {sBr}, v48")
    a("s_waitcnt lgkmcnt(0)")
    a("s_cbranch_vccz L_mok")
    retry("L_mpoll")
    a("L_mok:")
    for r in range(4):
        a(f"v_add_f32 v{36+r}, v{36+r}, v{40+r}")
    for r in range(4):
        a(f"v_fmac_f32 v{44+r}, v{vAcc+r}, v{vFac}")
    for r in range(4):
        a(f"v_add_f32 v{44+r}, v{36+r}, v{44+r}")
    settag((44, 47))
    pubstore((f"v{vRec}", "v[44:47]"))
    stamp(7)
    a(f"v_add_u32 v{vRec}, 0x40000, v{vRec}")
    a("s_branch L_done")
    a("L_part:")
    for r in range(4):
        a(f"v_mul_f32 v{vAcc+r}, v{vAcc+r}, v{vFac}")
    a(f"ds_write_b128 v{vRed}, v[{vAcc}:{vAcc+3}]")
    a("L_done:")
    flag(f"v{vCwA}", F_DONE, f"v{T0}")
    stamp(5)
    a(f"s_add_u32 {sBr}, {sBr}, 1")
    a(f"s_cmp_eq_u32 {sBr}, 2")
    a("s_cbranch_scc1 L_branch")
    a(f"s_cmp_lt_u32 {sJ}, 8")
    a("s_cbranch_scc1 L_cdone")

    a("L_gpoll:")
    for k in range(2):
        a(f"global_load_dwordx4 v[{vO+4*k}:{vO+4*k+3}], v{vGa}, {WS} offset:{k*512} sc1")
    a("s_waitcnt vmcnt(0)")
    untag(ends(vO, 2), f"v{vO+12}")
    a("s_cbranch_vccz L_gok")
    retry("L_gpoll")
    a("L_gok:")
    stamp(6)
    for r in range(4):
        a(f"v_permlane32_swap_b32 v{vO+r}, v{vO+4+r}")
    for r in range(4):
        a(f"v_add_f32 v{vO+r}, v{vO+r}, v{vO+4+r}")
    a(f"v_mov_b32 v{vO+12}, {sPass}")
    for r in range(2):
        a(f"v_permlane16_swap_b32 v{vO+r}, v{vO+2+r}")
    for r in range(2):
        a(f"v_add_f32 v{vO+r}, v{vO+r}, v{vO+2+r}")
    for r in range(2):
        a(f"v_add_f32_dpp v{vO+r}, v{vO+r}, v{vO+r} row_ror:8 row_mask:0xf bank_mask:0xf")
    a(f"v_cvt_pk_bf16_f32 v{vO}, v{vO}, v{vO+1}")
    a(f"ds_write_b32 v{vGa+1}, v{vO}")
    flag(f"v{vCwA}", F_G, f"v{vO+12}")
    a(f"s_cmp_eq_u32 {sCw}, 3")
    a("s_cbranch_scc1 L_gfin")
    a("L_gsync:")
    a(f"ds_read_b128 v[{vO+16}:{vO+19}], {vMisc} offset:{F_G}")
    for ks in range(4):
        a(f"ds_read_b128 v[{vA+4*ks}:{vA+4*ks+3}], v{vGa+4} offset:{OBF + ks*64}")
    a("s_waitcnt lgkmcnt(4)")
    below4(vO + 16, sPass)
    a("s_cbranch_vccz L_gmm")
    a("s_waitcnt lgkmcnt(0)")
    retry("L_gsync")
    a("L_gmm:")
    for ks in range(4):
        a(f"s_waitcnt lgkmcnt({3-ks})")
        for tt in range(3):
            mfma(vY + 4 * tt, vA + 4 * ks, vW + (tt * 4 + ks) * 4, ks == 0)
    a(f"s_lshr_b32 {sT0}, {sJ}, 3")
    a(f"s_cmp_eq_u32 {sT0}, {sPass}")
    a("s_cbranch_scc1 L_gfin")
    a("s_mov_b32 exec_hi, 0")
    for tt in range(3):
        settag((vY + 4 * tt,))
        a(f"global_store_dword v{vGa+2 if tt == 0 else vGa+3}, v{vY+4*tt}, {WS} offset:{-4096 if tt == 1 else 0} sc1")
    a("s_mov_b32 exec_hi, -1")
    a("L_gfin:")
    a(f"v_add_u32 v{vGa}, 0x40000, v{vGa}")
    a(f"s_add_u32 {sPass}, {sPass}, 1")
    a(f"s_cmp_eq_u32 {sPass}, 2")
    a("s_cbranch_scc1 L_mid")
    a("L_cdone:")
    finish()

    a("L_factor:")
    a(f"v_and_b32 v{T0}, 8, v0")
    a(f"v_add_u32 v{T0}, v{T0}, {vMisc}")
    poll1(F_FAC, sFl, sBr, f"v{T1}", False, psleep)
    a(f"ds_read_b64 v[36:37], v{T0} offset:{FACB}")
    a(f"s_add_u32 {sEnd}, {sRh}, {32 - mlr}")
    a("s_waitcnt lgkmcnt(0)")
    a(f"v_sub_f32 v36, v{vMax}, v36")
    a(f"v_mul_f32 v36, {sLg}, v36")
    a("v_exp_f32 v36, v36")
    a(f"v_mul_f32 v{vFac}, v36, v37")
    a("s_branch L_vtile")

    sCur, sPrev, sXo, sIt, sSl, sX, sLast = "s50", "s51", "s52", "s53", "s54", "s55", "s56"
    a("L_control:")
    a(f"s_lshr_b32 {sSl}, s2, 3")
    a(f"s_and_b32 {sX}, s2, 7")
    a(f"s_mul_i32 {sT0}, {sX}, {ls}")
    a(f"s_add_u32 {sT0}, {sT0}, {PROG}")
    a("v_and_b32 v4, 31, v0")
    a(f"v_lshl_add_u32 v4, v4, 2, {sT0}")
    a(f"s_lshl_b64 s[58:59], 1, {sSl}")
    a(f"s_cmp_lt_u32 {sSl}, 8")
    a(f"s_cselect_b32 {sT0}, {sSl}, {sX}")
    a(f"s_mul_i32 {sT0}, {sT0}, {ls}")
    a(f"s_add_u32 {sT0}, {sT0}, {GPB}")
    a(f"v_mov_b32 v12, {sT0}")
    a(f"s_mov_b32 {sLast}, 0")
    a(f"s_mov_b32 {sXo}, 0x80000000")
    a(f"s_mov_b32 {sIt}, 0")
    poll1(F_QRDY, sFl, 1, "v5", False, hsleep)
    a(f"ds_read_b32 v{vTag}, {vMisc} offset:{F_TAG}")
    a(f"ds_read_b32 v5, {vMisc} offset:{F_CO}")
    a(f"ds_read_b32 v6, {vMisc} offset:{F_LANDED}")
    a("s_waitcnt lgkmcnt(0)")
    a(f"v_readfirstlane_b32 {sT0}, v5")
    a(f"v_readfirstlane_b32 {sPrev}, v6")
    a(f"s_cmp_eq_u32 {sT0}, 0")
    a("s_cbranch_scc1 L_cend")
    a("L_cloop:")
    a(f"ds_read_b32 v6, {vMisc} offset:{F_LANDED}")
    a("s_waitcnt lgkmcnt(0)")
    a(f"v_readfirstlane_b32 {sCur}, v6")
    a(f"v_lshl_or_b32 v5, v6, 8, v{vTag}")
    a(f"v_or_b32 v5, {sXo}, v5")
    a("s_mov_b64 exec, s[58:59]")
    a(f"global_store_dword v4, v5, {WS}")
    a("s_mov_b64 exec, -1")
    a(f"s_cmp_ge_i32 {sCur}, {END - 32}")
    a("s_cbranch_scc1 L_cend")
    a(f"global_load_dword v7, v4, {WS} sc1")
    a(f"s_cmp_ge_u32 {sSl}, 8")
    a("s_cbranch_scc1 L_cnold")
    a("s_mov_b64 exec, 1")
    a(f"global_load_dword v9, v12, {WS} sc1")
    a("s_mov_b64 exec, -1")
    a("L_cnold:")
    a(f"s_add_u32 {sT1}, {sCur}, {sPrev}")
    a(f"s_lshl_b32 {sT1}, {sT1}, 4")
    a(f"s_mov_b32 {sPrev}, {sCur}")
    a("s_waitcnt vmcnt(0)")
    a(f"v_xor_b32 v7, v{vTag}, v7")
    a(f"v_and_b32 v8, {sFF}, v7")
    a("v_cmp_ne_u32 vcc, 0, v8")
    a("s_cbranch_vccnz L_cnext")
    a("v_ashrrev_i32 v8, 20, v7")
    a("v_cmp_eq_u32 vcc, 0xfffff800, v8")
    a(f"v_readlane_b32 {sT3}, v8, {sX}")
    red3("v_add_u32", "v8")
    a(f"s_and_b32 {sT0}, vcc_lo, 0xff")
    a("s_cbranch_scc1 L_cnox")
    a(f"v_readfirstlane_b32 {sT2}, v8")
    a(f"s_lshl_b32 {sT3}, {sT3}, 3")
    a(f"s_sub_i32 {sT2}, {sT2}, {sT3}")
    a(f"s_add_i32 {sT2}, {sT2}, {xb * 8}")
    a(f"s_lshl_b32 {sT2}, {sT2}, {2 + xg}")
    a(f"s_sub_u32 {sT1}, {sT1}, {sT2}")
    a("L_cnox:")
    a("v_bfe_u32 v7, v7, 8, 12")
    red4("v_add_u32", "v7")
    xrow("v_add_u32", "v7", "v8", (16,))
    a(f"v_subrev_u32 v8, {sT1}, v7")
    a(f"v_add_u32 v8, {16 << gain}, v8")
    a(f"v_ashrrev_i32 v8, {5 + gain}, v8")
    flag(vMisc, F_W, "v8")
    a(f"s_cmp_lt_u32 {sSl}, 8")
    a("s_cbranch_scc1 L_cwatch")
    a(f"s_cmp_eq_u32 {sSl}, 8")
    a("s_cbranch_scc0 L_cnext")
    a(f"s_sub_u32 {sIt}, {sIt}, 1")
    a("s_cbranch_scc0 L_cnext")
    a(f"s_mov_b32 {sIt}, {xm - 1}")
    a(f"v_lshl_or_b32 v5, v7, 8, v{vTag}")
    a("s_mov_b64 exec, 1")
    a(f"global_store_dword v12, v5, {WS} sc1")
    a("s_mov_b64 exec, -1")
    a("s_branch L_cnext")
    a("L_cwatch:")
    a(f"v_xor_b32 v9, v{vTag}, v9")
    a(f"v_readfirstlane_b32 {sT2}, v7")
    a(f"v_readfirstlane_b32 {sT0}, v9")
    a(f"s_and_b32 {sT3}, {sT0}, 0xff")
    a("s_cbranch_scc1 L_cnext")
    a(f"s_cmp_eq_u32 {sT0}, {sLast}")
    a("s_cbranch_scc1 L_cnext")
    a(f"s_mov_b32 {sLast}, {sT0}")
    a(f"s_lshr_b32 {sT0}, {sT0}, 8")
    a(f"s_sub_i32 {sT0}, {sT0}, {sT2}")
    a(f"s_ashr_i32 {sT0}, {sT0}, 5")
    a(f"s_max_i32 {sT0}, {sT0}, -200")
    a(f"s_min_i32 {sT0}, {sT0}, 200")
    a(f"s_cmp_eq_u32 {sSl}, {sX}")
    a("s_cbranch_scc0 L_cset")
    a(f"s_cmp_eq_u32 {sXo}, 0x80000000")
    a("s_cbranch_scc1 L_cset")
    a(f"s_ashr_i32 {sT3}, {sXo}, 20")
    a(f"s_sub_i32 {sT0}, {sT0}, {sT3}")
    a(f"s_add_i32 {sT0}, {sT0}, {1 << (filt - 1)}")
    a(f"s_ashr_i32 {sT0}, {sT0}, {filt}")
    a(f"s_add_i32 {sT0}, {sT0}, {sT3}")
    a("L_cset:")
    a(f"s_lshl_b32 {sXo}, {sT0}, 20")
    a("L_cnext:")
    retry("L_cloop")
    a("L_cend:")
    finish()
    a("L_exit:")
    a("s_endpgm")

    body_, added = pad(L)
    nv = 176
    out = [HEADER.rstrip(), f"; @launch grid=(256,1,1) block=({NWAVES*64},1,1) lds={LDS}", DOC,
           '.amdgcn_target "amdgcn-amd-amdhsa--gfx950"', ".text", f".globl {NAME}_kernel", ".p2align 8",
           f".type {NAME}_kernel,@function"]
    out += [l if l.endswith(":") else "    " + l for l in body_]
    out += ['.section .rodata,"a"', ".p2align 6", f".amdhsa_kernel {NAME}_kernel",
            f"  .amdhsa_next_free_vgpr {nv}", "  .amdhsa_next_free_sgpr 100", f"  .amdhsa_accum_offset {nv}",
            "  .amdhsa_group_segment_fixed_size 0", "  .amdhsa_kernarg_size 112", "  .amdhsa_user_sgpr_count 2",
            "  .amdhsa_user_sgpr_kernarg_segment_ptr 1", "  .amdhsa_system_sgpr_workgroup_id_x 1",
            "  .amdhsa_float_denorm_mode_32 3", ".end_amdhsa_kernel"]
    return "\n".join(out) + "\n"

if __name__ == "__main__":
    kw = eval("dict(" + (sys.argv[2] if len(sys.argv) > 2 else "") + ")")
    open(sys.argv[1], "w").write(gen(**kw))
```
